```python
import torch

def _softmax(x, axis=-1):
    return torch.softmax(x, dim=axis)
def _gelu(x):
    return torch.nn.functional.gelu(x, approximate="tanh")
def _silu(x):
    return torch.nn.functional.silu(x)
def _sigmoid(x):
    return torch.sigmoid(x)
def _layernorm(x, axis=-1, eps=1e-5):
    m = x.mean(dim=axis, keepdim=True)
    v = x.var(dim=axis, keepdim=True, unbiased=False)
    return (x - m) / torch.sqrt(v + eps)
def _scatter_add(tgt, idx, src, axis=0):
    return tgt.clone().index_add_(axis, idx, src)
def _segment_sum(src, seg, n):
    out = torch.zeros((n,) + src.shape[1:], dtype=src.dtype)
    return out.index_add_(0, seg, src)
def _pad(x, pw):
    flat = tuple(v for pair in reversed(pw) for v in pair)
    return torch.nn.functional.pad(x, flat)

kernel_name = 'recurrent_scan__mha_block_cached__glu_gated_reglu__prompt'

def setup_inputs():

    _w = (lambda a: (lambda t: t.to(torch.bfloat16) if t.is_floating_point() else t)(torch.as_tensor(a)))
    def _A_setup():
        B, Sq, D = 1, 2048, 640
        H, Sk, Dh = 32, 2048, 128
        return {
            "x": _w((lambda *s: torch.randn(*s, dtype=torch.bfloat16) * 0.05)(B, Sq, D)),
            "k_cache": _w((lambda *s: torch.randn(*s, dtype=torch.bfloat16) * 1.6)(B, H, Sk, Dh)),
            "v_cache": _w((lambda *s: torch.randn(*s, dtype=torch.bfloat16) * 1.6)(B, H, Sk, Dh)),
            "wq": _w((lambda *s: torch.randn(*s, dtype=torch.bfloat16) * 1.6)(D, H * Dh) * (D ** -0.5)),
            "wo": _w((lambda *s: torch.randn(*s, dtype=torch.bfloat16) * 1.6)(H * Dh, D) * ((H * Dh) ** -0.5)),
        }
    _A_in = _A_setup()

    def _B_setup():
        B, S, D, F = 1, 2048, 640, 1728
        return {
            "x": _w((lambda *s: torch.randn(*s, dtype=torch.bfloat16) * 0.05)(B, S, D)),
            "W_gate": _w((lambda *s: torch.randn(*s, dtype=torch.bfloat16) * 0.2)(D, F) * (2.0 / D) ** 0.5),
            "W_up": _w((lambda *s: torch.randn(*s, dtype=torch.bfloat16) * 0.2)(D, F) * (2.0 / D) ** 0.5),
            "W_down": _w((lambda *s: torch.randn(*s, dtype=torch.bfloat16) * 0.2)(F, D) * (1.0 / F) ** 0.5),
        }
    _B_in = _B_setup()

    return {
        "A_x": _A_in["x"],
        "A_k_cache": _A_in["k_cache"],
        "A_v_cache": _A_in["v_cache"],
        "A_wq": _A_in["wq"],
        "A_wo": _A_in["wo"],
        "B_x": _B_in["x"],
        "B_W_gate": _B_in["W_gate"],
        "B_W_up": _B_in["W_up"],
        "B_W_down": _B_in["W_down"],
    }

def reference(A_x, A_k_cache, A_v_cache, A_wq, A_wo, B_x, B_W_gate, B_W_up, B_W_down):
    def _A_ref(x, k_cache, v_cache, wq, wo):
        B, Sq, D = x.shape
        H, Dh = 32, 128
        q = (lambda x, *d: x.permute(*d))((x @ wq).reshape(B, Sq, H, Dh), 0, 2, 1, 3)
        scores = torch.einsum("bhqd,bhkd->bhqk", q, k_cache) * (Dh ** -0.5)
        p = _softmax(scores, axis=-1)
        o = torch.einsum("bhqk,bhkd->bhqd", p, v_cache)
        return (lambda x, *d: x.permute(*d))(o, 0, 2, 1, 3).reshape(B, Sq, H * Dh) @ wo

    def _B_ref(x, W_gate, W_up, W_down):
        gate = torch.einsum("bsd,df->bsf", x, W_gate)
        up = torch.einsum("bsd,df->bsf", x, W_up)
        gate = gate * (lambda x, dt: x.to(dt))(gate > 0, gate.dtype)
        h = gate * up
        return torch.einsum("bsf,fd->bsd", h, W_down)

    x = A_x
    xn = _layernorm(x, axis=-1)
    s = _A_ref(xn, A_k_cache, A_v_cache, A_wq, A_wo)
    g = _silu(_B_ref(xn, B_W_gate, B_W_up, B_W_down))
    return x + s * g
```

```python
import re

def expand(tok):
    tok = tok.strip()
    tok = tok.lstrip('-')
    m = re.fullmatch(r'abs\((.*)\)', tok)
    if m: tok = m.group(1)
    m = re.fullmatch(r'\|(.*)\|', tok)
    if m: tok = m.group(1)
    m = re.fullmatch(r'([vas])\[(\d+):(\d+)\]', tok)
    if m: return [f"{m.group(1)}{i}" for i in range(int(m.group(2)), int(m.group(3))+1)]
    m = re.fullmatch(r'([vas])(\d+)', tok)
    if m: return [tok]
    if tok in ('vcc', 'exec', 'm0'): return [tok]
    return []

TRANS = ('v_exp_f32','v_log_f32','v_rcp_f32','v_rsq_f32','v_sqrt_f32')

class I:
    __slots__ = ('text','kind','rd','wr','op','c','tag')
    def __init__(self, text, tag=None):
        self.text = text; self.tag = tag
        t = text.split(';')[0].strip()
        self.c = None
        if t.endswith(':') or t.startswith('.') or not t:
            self.kind='label'; self.rd=set(); self.wr=set(); self.op=''; return
        parts = t.split(None, 1)
        op = parts[0]; self.op = op
        ops = []
        if len(parts) > 1:
            raw = [x.strip() for x in re.split(r',(?![^\[]*\])', parts[1])]
            for x in raw:
                ops.append(x.split()[0] if x.split() else x)
        R = [expand(x) for x in ops]
        flat = lambda L: set(y for x in L for y in x)
        if op.startswith('v_mfma'):
            self.kind='mfma'; self.wr=set(R[0]); self.rd=flat(R[1:3]); self.c=R[3]
        elif op.startswith('ds_read'):
            self.kind='ldsr'; self.wr=set(R[0]); self.rd=flat(R[1:])
        elif op.startswith('ds_write'):
            self.kind='ldsw'; self.wr=set(); self.rd=flat(R)
        elif op.startswith('ds_'):
            self.kind='ldsr'; self.wr=set(R[0]); self.rd=flat(R[1:])
        elif op.startswith('buffer_load') or op.startswith('global_load'):
            if re.search(r'\blds\b', t) or 'load_lds' in op:
                self.kind='dma'; self.wr=set(); self.rd=flat(R)|{'m0'}
            else:
                self.kind='vload'; self.wr=set(R[0]); self.rd=flat(R[1:])
        elif op.startswith('buffer_store') or op.startswith('global_store'):
            self.kind='vstore'; self.wr=set(); self.rd=flat(R)
        elif 'atomic' in op and not op.startswith('s_'):
            self.kind='vstore'; self.wr=set(); self.rd=flat(R)
        elif op in ('buffer_wbl2','buffer_inv'):
            self.kind='vstore'; self.wr=set(); self.rd=set()
        elif op.startswith('v_'):
            self.kind='trans' if op.replace('_e32','').replace('_e64','') in TRANS else 'valu'
            self.wr=set(R[0]); self.rd=flat(R[1:])
            if 'permlane' in op and 'swap' in op:
                self.wr=flat(R[0:2]); self.rd=flat(R[0:2])
            if op.startswith('v_fmac') or op.startswith('v_dot2c') or '_dpp' in op: self.rd |= set(R[0])
            if op.startswith('v_cndmask') and len(R)==3: self.rd |= {'vcc'}
            if op.startswith('v_add_co') or op.startswith('v_addc_co'): self.wr |= set(R[1])
        elif op.startswith('s_load') or op in('s_memtime','s_memrealtime'):
            self.kind='smem'; self.wr=set(R[0]); self.rd=flat(R[1:])
        elif op=='s_waitcnt': self.kind='wait'; self.rd=set(); self.wr=set()
        elif op=='s_nop': self.kind='nop'; self.rd=set(); self.wr=set()
        elif op=='s_barrier': self.kind='bar'; self.rd=set(); self.wr=set()
        elif op.startswith('s_cbranch') or op in('s_branch','s_endpgm'): self.kind='br'; self.rd=set(); self.wr=set()
        elif op.startswith('s_cmp'): self.kind='salu'; self.rd=flat(R); self.wr=set()
        elif op.startswith('s_'):
            self.kind='salu'; self.wr=set(R[0]) if R else set(); self.rd=flat(R[1:])
            if 'saveexec' in op: self.wr |= {'exec'}
        else:
            raise ValueError(text)
    def states(self):
        if self.kind=='label': return 0
        if self.kind=='nop': return int(self.text.split()[1])+1
        return 1

def need(p, c):
    n = 0
    isv = lambda k: k in ('valu','trans')
    crd = set(c.rd) | (set(c.c) if c.c else set())
    if isv(p.kind):
        vw = {r for r in p.wr if r[0] in 'va' and r!='vcc'}
        sw = {r for r in p.wr if r[0]=='s' or r=='vcc'}
        if c.kind=='mfma' and vw & crd: n=max(n,2)
        if isv(c.kind):
            if p.kind=='trans' and vw & c.rd: n=max(n,1)
            if ('permlane' in c.op or '_dpp' in c.op) and vw & c.rd: n=max(n,2)
            if ('readlane' in c.op or 'readfirstlane' in c.op) and vw & c.rd: n=max(n,1)
            if sw & c.rd: n=max(n,2)
        if c.kind in('vload','vstore','dma') and sw & c.rd: n=max(n,5)
        if c.kind in('salu','smem','br') and sw & c.rd: n=max(n,4)
        if c.kind=='br' and 'vcc' in sw and 'vcc' in c.op: n=max(n,5)
    if p.kind=='mfma':
        passes = 8 if '32x32' in p.op else 4
        far = {4:8, 8:12}[passes]; ovl={4:6,8:10}[passes]; war={4:3,8:7}[passes]
        if c.kind=='mfma':
            if p.wr & c.rd: n=max(n,far)
            if c.c and p.wr & set(c.c) and not (set(c.c)==p.wr and p.op==c.op): n=max(n,ovl)
            if p.wr & c.wr and not (c.c and set(c.c)==p.wr): n=max(n,ovl)
        elif isv(c.kind):
            if p.wr & (c.rd|c.wr): n=max(n,far)
            if p.c and set(p.c) & c.wr: n=max(n,war)
        elif c.kind in('vload','vstore','dma','ldsr','ldsw'):
            if p.wr & (c.rd|c.wr): n=max(n,far)
            if p.c and set(p.c) & c.wr: n=max(n,war)
    if p.kind=='salu' and 'm0' in p.wr and c.kind=='dma': n=max(n,1)
    if p.kind in('vstore','ldsw') and ('x4' in p.op or 'x3' in p.op or 'b128' in p.op) and isv(c.kind) and (p.rd & c.wr): n=max(n,2)
    return n

class Prog:
    def __init__(self): self.L=[]
    def e(self, text, tag=None):
        for t in text.split('\n'):
            t=t.strip()
            if t: self.L.append(I(t, tag))
    def ext(self, items):
        for x in items: self.L.append(x if isinstance(x,I) else I(x))

def pad_hazards(L, report=None):
    out=[]
    for ins in L:
        if ins.kind!='label':
            req=0; dist=0
            for p in reversed(out):
                if dist>=13: break
                if p.kind=='label': continue
                n=need(p,ins)
                if n>dist: req=max(req,n-dist)
                dist+=p.states()
            if req>0:
                if report is not None: report.append((len(out), req, ins.text, ins.tag))
                while req>0:
                    k=min(req,16); out.append(I(f"s_nop {k-1}", ins.tag)); req-=k
        out.append(ins)
    return out

def parse_wait(t):
    vm = re.search(r'vmcnt\((\d+)\)', t); lg = re.search(r'lgkmcnt\((\d+)\)', t)
    return (int(vm.group(1)) if vm else None, int(lg.group(1)) if lg else None)

def insert_waits(L, hoist=True, slack=6):
    out=[]
    lds=[]
    vm=[]
    for ins in L:
        if ins.kind=='wait':
            v,l=parse_wait(ins.text)
            if l is not None: lds=lds[len(lds)-l:] if l>0 else []
            if v is not None: vm=vm[len(vm)-v:] if v>0 else []
            out.append(ins); continue
        use=set(ins.rd)|set(ins.wr)|(set(ins.c) if ins.c else set())
        for q,name,mx in ((lds,'lgkmcnt',15),(vm,'vmcnt',63)):
            idx=-1
            for k,(pos,w) in enumerate(q):
                if w & use: idx=k
            if idx>=0:
                pos_ins=len(out)
                if hoist and ins.kind=='mfma':
                    j=len(out)-1
                    while j>=0 and out[j].kind not in('mfma','label','br','bar'): j-=1
                    if j>=0 and out[j].kind=='mfma' and q[idx][0]<=j: pos_ins=j+1
                older=[k for k,(pos,w) in enumerate(q) if pos<pos_ins]
                cover=idx
                if hoist and ins.kind=='mfma':
                    for k in older:
                        if k>cover:
                            nm=sum(1 for z in out[q[k][0]:pos_ins] if z.kind=='mfma')
                            if nm>=slack: cover=k
                n=len(older)-1-cover
                n=min(n,mx)
                out.insert(pos_ins, I(f"s_waitcnt {name}({n})", ins.tag if pos_ins==len(out) else out[pos_ins-1].tag))
                for qq in (lds,vm):
                    for k in range(len(qq)):
                        if qq[k][0]>=pos_ins: qq[k]=(qq[k][0]+1,qq[k][1])
                newer=[x for k,x in enumerate(q) if k>=len(older)]
                keep=[q[k] for k in older][len(older)-n:] if n>0 else []
                q[:]=keep+newer
        out.append(ins)
        if ins.kind in('ldsr','ldsw'): lds.append((len(out)-1,set(ins.wr)))
        if ins.kind in('vload','vstore','dma'): vm.append((len(out)-1,set(ins.wr)))
    return out

def finish(L, report=None, **kw):
    return pad_hazards(insert_waits(L, **kw), report)

def text(L): return "\n".join(("" if i.kind=='label' else "  ")+i.text for i in L)+"\n"

def kd(name, vgpr, accum, sgpr=102):
    return f""".section .rodata,"a"
.p2align 6
.amdhsa_kernel {name}
  .amdhsa_next_free_vgpr {vgpr}
  .amdhsa_next_free_sgpr {sgpr}
  .amdhsa_accum_offset {accum}
  .amdhsa_group_segment_fixed_size 0
  .amdhsa_kernarg_size 96
  .amdhsa_user_sgpr_count 2
  .amdhsa_user_sgpr_kernarg_segment_ptr 1
  .amdhsa_system_sgpr_workgroup_id_x 1
.end_amdhsa_kernel
.text
"""
def head(name):
    return f".globl {name}\n.p2align 8\n.type {name},@function\n{name}:\n"
```

```python
import sys, math
from asmlib import *

WS_XN = 0
WS_AF = 4<<20
WS_WF = 32<<20
AF_RT = 184*4096
WF_CT = 184*5120
NSTEP = 182

def srd(p, s, lo, hi, nbytes):
    p.e(f"s_mov_b32 s{s}, {lo}\ns_mov_b32 s{s+1}, {hi}\ns_mov_b32 s{s+2}, {nbytes}\ns_mov_b32 s{s+3}, 0x20000")
def srd_off(p, s, base, off, nbytes):
    p.e(f"s_add_u32 s{s}, s{base}, {off}\ns_addc_u32 s{s+1}, s{base+1}, 0\ns_mov_b32 s{s+2}, {nbytes}\ns_mov_b32 s{s+3}, 0x20000")

def bf16_round(p, d, s):
    p.e(f"v_cvt_pk_bf16_f32 v{d}, v{s}, v{s}\nv_and_b32 v{d}, 0xffff0000, v{d}")

def k0():
    p = Prog()
    p.e("s_cmp_ge_u32 s2, 438\ns_cbranch_scc1 K0_end")
    p.e("s_load_dwordx2 s[4:5], s[0:1], 0\ns_load_dwordx2 s[6:7], s[0:1], 88\ns_load_dwordx2 s[20:21], s[0:1], 32\ns_load_dwordx2 s[22:23], s[0:1], 64")
    p.e("v_and_b32 v1, 63, v0\nv_lshrrev_b32 v2, 6, v0")
    p.e("v_readfirstlane_b32 s3, v2")
    p.e("s_waitcnt lgkmcnt(0)")
    srd(p, 8, "s4", "s5", 2048*1280)
    srd(p, 12, "s6", "s7", 2048*1280)
    p.e("s_sub_u32 s24, s2, 256")
    p.e("s_cmp_lt_u32 s24, 128\ns_cselect_b32 s26, s20, s22\ns_cselect_b32 s27, s21, s23\ns_cselect_b32 s25, 0, 128")
    p.e("s_sub_u32 s25, s24, s25\ns_and_b32 s25, s25, 127\ns_mul_i32 s25, s25, 40960")
    srd_off(p, 16, 26, "s25", 40960)
    srd_off(p, 28, 6, WS_WF, 8*WF_CT)
    p.e("s_cmp_ge_u32 s2, 256\ns_cbranch_scc1 K0_relayout")
    p.e("v_lshrrev_b32 v3, 5, v0\ns_lshl_b32 s24, s2, 3\nv_add_u32 v3, s24, v3\nv_mul_u32_u24 v3, 1280, v3")
    p.e("v_and_b32 v4, 31, v0\nv_lshlrev_b32 v4, 3, v4\nv_add_u32 v3, v3, v4")
    for i in range(5): p.e(f"buffer_load_dwordx2 v[{10+2*i}:{11+2*i}], v3, s[8:11], 0 offen offset:{256*i}")
    for i in range(10):
        p.e(f"v_lshlrev_b32 v{20+2*i}, 16, v{10+i}\nv_and_b32 v{21+2*i}, 0xffff0000, v{10+i}")
    def red32(r, t):
        p.e(f"v_add_f32_dpp v{r}, v{r}, v{r} quad_perm:[1,0,3,2] row_mask:0xf bank_mask:0xf")
        p.e(f"v_add_f32_dpp v{r}, v{r}, v{r} quad_perm:[2,3,0,1] row_mask:0xf bank_mask:0xf")
        p.e(f"v_add_f32_dpp v{r}, v{r}, v{r} row_half_mirror row_mask:0xf bank_mask:0xf")
        p.e(f"v_add_f32_dpp v{r}, v{r}, v{r} row_mirror row_mask:0xf bank_mask:0xf")
        p.e(f"v_mov_b32 v{t}, v{r}")
        p.e(f"v_permlane16_swap_b32 v{r}, v{t}")
        p.e(f"v_add_f32 v{r}, v{r}, v{t}")
    p.e("v_add_f32 v5, v20, v21")
    for i in range(22,40): p.e(f"v_add_f32 v5, v5, v{i}")
    red32(5, 6)
    p.e(f"v_mul_f32 v5, 0x{f2u(1.0/640):08x}, v5")
    p.e("v_mov_b32 v7, 0")
    for i in range(20,40): p.e(f"v_sub_f32 v8, v{i}, v5\nv_fmac_f32 v7, v8, v8")
    red32(7, 6)
    p.e(f"v_mul_f32 v7, 0x{f2u(1.0/640):08x}, v7")
    bf16_round(p,5,5); bf16_round(p,7,7)
    p.e(f"v_add_f32 v7, 0x{f2u(1e-5):08x}, v7"); bf16_round(p,7,7)
    p.e("v_sqrt_f32 v7, v7"); bf16_round(p,7,7)
    p.e("v_rcp_f32 v7, v7")
    for i in range(10):
        a,b=20+2*i,21+2*i
        p.e(f"v_sub_f32 v{a}, v{a}, v5\nv_sub_f32 v{b}, v{b}, v5\nv_cvt_pk_bf16_f32 v9, v{a}, v{b}")
        p.e(f"v_lshlrev_b32 v{a}, 16, v9\nv_and_b32 v{b}, 0xffff0000, v9")
        p.e(f"v_mul_f32 v{a}, v{a}, v7\nv_mul_f32 v{b}, v{b}, v7\nv_cvt_pk_bf16_f32 v{10+i}, v{a}, v{b}")
    for i in range(5): p.e(f"buffer_store_dwordx2 v[{10+2*i}:{11+2*i}], v3, s[12:15], 0 offen offset:{256*i}")
    p.e("s_endpgm")
    p.e("K0_relayout:")
    p.e("v_lshlrev_b32 v3, 4, v1")
    p.e("s_mul_i32 s33, s3, 10240")
    for i in range(10):
        p.e(f"s_add_u32 s34, s33, {i*1024}\ns_mov_b32 m0, s34\ns_nop 0")
        p.e(f"buffer_load_dwordx4 v3, s[16:19], s34 offen lds")
    p.e("v_lshrrev_b32 v4, 2, v1\nv_mul_u32_u24 v4, 1280, v4")
    p.e("v_and_b32 v5, 3, v1\nv_mul_u32_u24 v5, 40, v5\nv_add_u32 v4, v4, v5")
    p.e("s_mul_i32 s35, s3, 320\nv_add_u32 v4, s35, v4")
    p.e(f"s_mul_i32 s36, s3, {2*WF_CT}\ns_mul_i32 s37, s24, 5120\ns_add_u32 s36, s36, s37\ns_add_u32 s37, s36, {WF_CT}")
    p.e("v_add_u32 v6, 4096, v3")
    p.e("s_waitcnt vmcnt(0)\ns_barrier")
    for c2 in range(2):
        for nt in range(5):
            d = 8+(c2*5+nt)*4
            off = c2*160+nt*8
            p.e(f"ds_read_b64_tr_b16 v[{d}:{d+1}], v4 offset:{off}")
            p.e(f"ds_read_b64_tr_b16 v[{d+2}:{d+3}], v4 offset:{off+16*1280}")
    for c2 in range(2):
        for nt in range(5):
            d = 8+(c2*5+nt)*4
            va, o = ("v3", nt*1024) if nt<4 else ("v6", 0)
            p.e(f"buffer_store_dwordx4 v[{d}:{d+3}], {va}, s[28:31], s{36+c2} offen offset:{o}")
    p.e("K0_end:\ns_endpgm")
    return finish(p.L, hoist=False)

import struct
def f2u(x): return struct.unpack("<I", struct.pack("<f", x))[0]

def k2(depth=6):
    p = Prog()
    p.e("s_cmp_ge_u32 s2, 256\ns_cbranch_scc1 K2_end")
    p.e("s_load_dwordx2 s[4:5], s[0:1], 88\ns_load_dwordx2 s[6:7], s[0:1], 72\ns_load_dwordx2 s[44:45], s[0:1], 0")
    p.e("v_and_b32 v1, 63, v0\nv_lshlrev_b32 v2, 4, v1\nv_lshrrev_b32 v3, 6, v0")
    p.e("v_readfirstlane_b32 s20, v3")
    p.e("s_and_b32 s21, s2, 7\ns_lshr_b32 s22, s2, 3")
    p.e("s_lshr_b32 s23, s22, 2\ns_lshr_b32 s24, s21, 1\ns_lshl_b32 s24, s24, 3\ns_add_u32 s23, s23, s24")
    p.e("s_and_b32 s24, s22, 3\ns_and_b32 s25, s21, 1\ns_lshl_b32 s25, s25, 2\ns_add_u32 s24, s24, s25")
    p.e("s_waitcnt lgkmcnt(0)")
    p.e(f"s_mul_i32 s26, s23, {AF_RT}\ns_add_u32 s26, s26, {WS_AF}")
    p.e(f"s_mul_i32 s28, s24, {WF_CT}\ns_add_u32 s28, s28, {WS_WF}")
    srd_off(p, 8, 4, "s26", NSTEP*4096)
    srd_off(p, 12, 4, "s28", NSTEP*5120)
    srd(p, 16, "s6", "s7", 2048*1280)
    srd(p, 48, "s44", "s45", 2048*1280)
    p.e("s_mul_i32 s30, s20, 32\ns_mul_i32 s31, s20, 14\ns_add_u32 s31, s31, 128")
    p.e("s_lshl_b32 s32, s30, 12\ns_mul_i32 s33, s30, 5120\ns_lshl_b32 s34, s31, 12\ns_mul_i32 s35, s31, 5120")
    p.e("v_add_u32 v3, 4096, v2")
    steps = 46
    def buf(s): return 8 + (s%depth)*36
    def load(s):
        b = buf(s)
        if s<32: p.e(f"s_add_u32 s40, s32, {s*4096}\ns_add_u32 s41, s33, {s*5120}")
        else: p.e(f"s_add_u32 s40, s34, {(s-32)*4096}\ns_add_u32 s41, s35, {(s-32)*5120}")
        for i in range(4): p.e(f"buffer_load_dwordx4 v[{b+i*4}:{b+i*4+3}], v2, s[8:11], s40 offen offset:{i*1024}")
        for i in range(4): p.e(f"buffer_load_dwordx4 v[{b+16+i*4}:{b+16+i*4+3}], v2, s[12:15], s41 offen offset:{i*1024}")
        p.e(f"buffer_load_dwordx4 v[{b+32}:{b+35}], v3, s[12:15], s41 offen")
    for s in range(depth): load(s)
    for r in range(160): p.e(f"v_accvgpr_write_b32 a{r}, 0")
    for s in range(steps):
        b = buf(s); ab = 0 if s<32 else 80
        p.e(f"s_waitcnt vmcnt({min(depth-1, steps-1-s)*9})")
        for n in range(5):
            for q in range(4):
                d = ab+(q*5+n)*4
                p.e(f"v_mfma_f32_16x16x32_bf16 a[{d}:{d+3}], v[{b+16+n*4}:{b+16+n*4+3}], v[{b+q*4}:{b+q*4+3}], a[{d}:{d+3}]")
        if s+depth<steps: load(s+depth)
    p.e("s_mul_i32 s36, s20, 10240\nv_add_u32 v4, s36, v2")
    p.e("v_add_u32 v5, 0x14000, v4")
    for q in range(4):
        for g2 in range(2):
            for n in range(5):
                d = g2*80+(q*5+n)*4
                va = "v4" if q<2 else "v5"
                p.e(f"ds_write_b128 {va}, a[{d}:{d+3}] offset:{(q&1)*40960+(g2*5+n)*1024}")
    p.e("s_lshl_b32 s37, s23, 6\ns_lshl_b32 s38, s20, 4\ns_add_u32 s37, s37, s38")
    p.e("v_and_b32 v6, 15, v1\nv_add_u32 v6, s37, v6\nv_mul_u32_u24 v6, 1280, v6")
    p.e("v_lshrrev_b32 v7, 4, v1\nv_mul_u32_u24 v7, 40, v7\nv_add_u32 v6, v6, v7\ns_mul_i32 s38, s24, 160\nv_add_u32 v6, s38, v6")
    for n in range(5): p.e(f"buffer_load_dwordx2 v[{200+2*n}:{201+2*n}], v6, s[48:51], 0 offen offset:{8*n}")
    p.e("s_mul_i32 s36, s20, 40960\nv_add_u32 v4, s36, v2")
    p.e("s_waitcnt lgkmcnt(0)\ns_barrier")
    for src in range(4):
        for t in range(10):
            d = 8+(src*10+t)*4
            p.e(f"ds_read_b128 v[{d}:{d+3}], v4 offset:{src*10240+t*1024}")
        if src==1:
            for r in range(40): p.e(f"v_add_f32 v{8+r}, v{8+r}, v{48+r}")
    for r in range(40): p.e(f"v_add_f32 v{88+r}, v{88+r}, v{128+r}")
    for r in range(40): p.e(f"v_add_f32 v{8+r}, v{8+r}, v{88+r}")
    for r in range(20):
        p.e(f"v_mul_f32 v{48+r}, 0x{f2u(-math.log2(math.e)):08x}, v{28+r}")
    for r in range(20): p.e(f"v_exp_f32 v{48+r}, v{48+r}")
    for r in range(20): p.e(f"v_add_f32 v{48+r}, 1.0, v{48+r}")
    for r in range(20): p.e(f"v_rcp_f32 v{48+r}, v{48+r}")
    for r in range(20): p.e(f"v_mul_f32 v{28+r}, v{28+r}, v{48+r}")
    for i in range(10):
        p.e(f"v_lshlrev_b32 v{48+2*i}, 16, v{200+i}\nv_and_b32 v{49+2*i}, 0xffff0000, v{200+i}")
    for r in range(20): p.e(f"v_fmac_f32 v{48+r}, v{8+r}, v{28+r}")
    for i in range(10): p.e(f"v_cvt_pk_bf16_f32 v{70+i}, v{48+2*i}, v{49+2*i}")
    for n in range(5): p.e(f"buffer_store_dwordx2 v[{70+2*n}:{71+2*n}], v6, s[16:19], 0 offen offset:{8*n}")
    p.e("K2_end:\ns_endpgm")
    return finish(p.L, hoist=False)
```

```python
from gen import *

MF = "v_mfma_f32_16x16x32_bf16"
S_X, S_WQ, S_WG, S_K, S_V, S_AF = 8, 12, 16, 24, 28, 32
S_WAVE=36; S_HEAD=37; S_QB=38; S_SIG=39
S_XOFF=40; S_WQOFF=41; S_WGOFF=42
S_MX=43; S_MWQ=44; S_MWG=45
S_KOFF=46; S_VOFF=47; S_MK=48; S_MV=49; S_CNT=50; S_T0=51; S_T1=52; S_SCALE=54
V_S=0
V_P=64
V_Q=128
V_NM=192
V_L=208
V_KA=212
V_VA=216
V_KD=224; V_VD=225
V_LANE=226; V_T=227
V_XD=232
V_WQD=240
V_WGD=244
V_WQA=248
V_WGA=252
V_XA=230
A_K=128; A_V=192

def r4(f,b): return f"{f}[{b}:{b+3}]"

def weave(mf, fills):
    out=[]
    for g,m in enumerate(mf):
        if m: out.append(m)
        out += fills.get(g,[])
    for g in sorted(fills):
        assert g>=0
        if g>=len(mf): out += fills[g]
    return out

def order_gap(items):
    key=lambda t: 0 if t.startswith('s_') else (1 if t.startswith(('ds_','buffer_')) else 2)
    return sorted(items,key=key)

def setup(p):
    p.e("s_cmp_ge_u32 s2, 256\ns_cbranch_scc1 K1_end")
    p.e("s_load_dwordx4 s[56:59], s[0:1], 8")
    p.e("s_load_dwordx2 s[60:61], s[0:1], 24")
    p.e("s_load_dwordx4 s[64:67], s[0:1], 48")
    p.e("s_load_dwordx2 s[68:69], s[0:1], 88")
    p.e(f"v_and_b32 v{V_LANE}, 63, v0\nv_lshrrev_b32 v1, 6, v0")
    p.e(f"v_readfirstlane_b32 s{S_WAVE}, v1")
    p.e(f"s_and_b32 s3, s2, 7\ns_lshr_b32 s4, s2, 3\ns_and_b32 s5, s4, 3\ns_lshr_b32 s{S_QB}, s4, 2")
    p.e(f"s_lshl_b32 s{S_HEAD}, s3, 2\ns_add_u32 s{S_HEAD}, s{S_HEAD}, s5")
    p.e(f"s_lshl_b32 s{S_SIG}, s5, 3\ns_add_u32 s{S_SIG}, s{S_SIG}, s3")
    p.e("s_waitcnt lgkmcnt(0)")
    p.e(f"s_mul_i32 s6, s{S_QB}, {256*1280}")
    srd_off(p, S_X, 68, "s6", 256*1280)
    p.e(f"s_lshl_b32 s6, s{S_HEAD}, 8")
    srd_off(p, S_WQ, 60, "s6", 0)
    p.e(f"s_sub_u32 s{S_WQ+2}, {640*8192}, s6")
    p.e(f"s_cmp_lt_u32 s{S_WAVE}, 2\ns_cselect_b32 s70, s64, s66\ns_cselect_b32 s71, s65, s67")
    p.e(f"s_lshl_b32 s6, s{S_SIG}, 7")
    srd_off(p, S_WG, 70, "s6", 0)
    p.e(f"s_sub_u32 s7, {640*3456}, s6\ns_cmp_lt_u32 s{S_SIG}, 27\ns_cselect_b32 s{S_WG+2}, s7, 0")
    p.e(f"s_lshl_b32 s6, s{S_HEAD}, 19")
    srd_off(p, S_K, 56, "s6", 524288)
    srd_off(p, S_V, 58, "s6", 524288)
    p.e(f"s_lshl_b32 s6, s{S_QB}, 2\ns_add_u32 s6, s6, s{S_WAVE}\ns_mul_i32 s6, s6, {AF_RT}\ns_add_u32 s6, s6, {WS_AF}")
    srd_off(p, S_AF, 68, "s6", NSTEP*4096)
    L=V_LANE
    p.e(f"v_lshrrev_b32 v1, 4, v{L}\nv_bfe_u32 v2, v{L}, 2, 2\nv_and_b32 v3, 3, v{L}\nv_and_b32 v4, 15, v{L}\nv_lshrrev_b32 v5, 3, v{L}\nv_and_b32 v6, 7, v{L}")
    p.e(f"s_lshl_b32 s6, s{S_WAVE}, 6\nv_add_u32 v7, s6, v5\nv_mul_u32_u24 v7, 1280, v7")
    p.e("v_xor_b32 v8, v6, v1\nv_xor_b32 v9, 4, v8\nv_lshl_add_u32 v8, v8, 4, v7\nv_lshl_add_u32 v9, v9, 4, v7")
    for i in range(8):
        p.e(f"v_add_u32 v{V_XD+i}, {i*10240-1024*(i&3)}, v{8+(i&1)}")
    p.e(f"s_lshl_b32 s6, s{S_WAVE}, 4\nv_add_u32 v7, s6, v1\nv_lshlrev_b32 v7, 13, v7")
    p.e("v_lshlrev_b32 v8, 2, v1\nv_xor_b32 v8, v4, v8\nv_lshl_add_u32 v8, v8, 4, v7")
    for i in range(4): p.e(f"v_add_u32 v{V_WQD+i}, {i*(32768-1024)}, v8")
    p.e(f"s_and_b32 s6, s{S_WAVE}, 1\ns_lshl_b32 s6, s6, 5\nv_add_u32 v7, s6, v5\nv_mul_u32_u24 v7, 3456, v7")
    p.e("v_and_b32 v8, 2, v5\nv_xor_b32 v8, v6, v8\nv_xor_b32 v9, 4, v8\nv_lshl_add_u32 v8, v8, 4, v7\nv_lshl_add_u32 v9, v9, 4, v7")
    for i in range(4): p.e(f"v_add_u32 v{V_WGD+i}, {i*(8*3456-1024)}, v{8+(i&1)}")
    p.e(f"s_lshl_b32 s{S_MX}, s{S_WAVE}, 13")
    p.e(f"s_lshl_b32 s{S_MK}, s{S_WAVE}, 12\ns_add_u32 s{S_MWQ}, s{S_MK}, 65536\ns_add_u32 s{S_MWG}, s{S_MK}, {65536+16384}\ns_add_u32 s{S_MV}, s{S_MK}, 65536")
    p.e(f"s_mov_b32 s{S_XOFF}, 0\ns_mov_b32 s{S_WQOFF}, 0\ns_mov_b32 s{S_WGOFF}, 0\ns_mov_b32 s{S_KOFF}, 0\ns_mov_b32 s{S_VOFF}, 0")

def setup2(p):
    p.e("v_lshl_add_u32 v7, v1, 3, v2\nv_lshlrev_b32 v8, 8, v7\nv_lshl_add_u32 v8, v3, 4, v8\nv_add_u32 v8, 0x10000, v8")
    for c in range(4): p.e(f"v_xor_b32 v9, {c}, v2\nv_lshl_add_u32 v{V_WQA+c}, v9, 6, v8")
    p.e("v_lshlrev_b32 v8, 7, v7\nv_lshl_add_u32 v8, v3, 3, v8\nv_add_u32 v8, 0x14000, v8")
    p.e("v_lshrrev_b32 v9, 1, v2\nv_and_b32 v10, 1, v1\nv_lshl_add_u32 v10, v10, 1, v9")
    for t in range(4): p.e(f"v_xor_b32 v9, {t}, v10\nv_lshl_add_u32 v{V_WGA+t}, v9, 5, v8")
    p.e(f"s_lshl_b32 s6, s{S_WAVE}, 6\nv_add_u32 v8, s6, v4\nv_lshlrev_b32 v8, 7, v8\nv_lshrrev_b32 v9, 1, v4\nv_xor_b32 v9, v9, v1")
    p.e(f"v_lshl_add_u32 v{V_XA}, v9, 4, v8\nv_xor_b32 v9, 4, v9\nv_lshl_add_u32 v{V_XA+1}, v9, 4, v8")
    p.e("v_lshl_add_u32 v8, v2, 4, v3\nv_lshlrev_b32 v8, 8, v8\nv_xor_b32 v9, v1, v4")
    for c in range(4): p.e(f"v_xor_b32 v10, {4*c}, v9\nv_lshl_add_u32 v{V_KA+c}, v10, 4, v8")
    p.e("v_lshl_add_u32 v8, v1, 4, v2\nv_lshlrev_b32 v8, 8, v8\nv_lshl_add_u32 v8, v3, 3, v8\nv_add_u32 v8, 0x10000, v8")
    p.e("v_and_b32 v9, 1, v1\nv_lshl_add_u32 v9, v9, 2, v2")
    for d in range(8): p.e(f"v_xor_b32 v10, {d}, v9\nv_lshl_add_u32 v{V_VA+d}, v10, 5, v8")
    p.e(f"s_lshl_b32 s6, s{S_WAVE}, 4\nv_add_u32 v8, s6, v1\nv_lshlrev_b32 v8, 8, v8")
    p.e(f"s_lshl_b32 s6, s{S_WAVE}, 2\nv_add_u32 v9, s6, v1\nv_xor_b32 v9, v9, v4\nv_lshl_add_u32 v{V_KD}, v9, 4, v8")
    p.e(f"s_and_b32 s6, s{S_WAVE}, 1\ns_lshl_b32 s6, s6, 2\nv_add_u32 v9, s6, v1\nv_lshlrev_b32 v9, 1, v9\nv_xor_b32 v9, v9, v4\nv_lshl_add_u32 v{V_VD}, v9, 4, v8")

def pro_dma(st):
    G=[]
    o=st*32768
    for h in range(2):
        for i in range(4):
            g=[]
            if i==0: g.append(f"s_add_u32 m0, s{S_MX}, {o+h*4096}")
            g.append(f"buffer_load_dwordx4 v{V_XD+h*4+i}, s[{S_X}:{S_X+3}], s{S_XOFF} offen offset:{i*1024} lds")
            G.append(g)
    for base,m,srd_,so in ((V_WQD,S_MWQ,S_WQ,S_WQOFF),(V_WGD,S_MWG,S_WG,S_WGOFF)):
        for i in range(4):
            g=[]
            if i==0: g.append(f"s_add_u32 m0, s{m}, {o}")
            g.append(f"buffer_load_dwordx4 v{base+i}, s[{srd_}:{srd_+3}], s{so} offen offset:{i*1024} lds")
            G.append(g)
    adv=[f"s_add_u32 s{S_XOFF}, s{S_XOFF}, 128", f"s_add_u32 s{S_WQOFF}, s{S_WQOFF}, {64*8192}", f"s_add_u32 s{S_WGOFF}, s{S_WGOFF}, {64*3456}"]
    return G, adv

def kv_dma(kind, slot):
    G=[]
    m,vd,srd_,so = (S_MK,V_KD,S_K,S_KOFF) if kind=='K' else (S_MV,V_VD,S_V,S_VOFF)
    for i in range(4):
        g=[]
        if i==0: g.append(f"s_add_u32 m0, s{m}, {slot*16384}")
        g.append(f"buffer_load_dwordx4 v{vd}, s[{srd_}:{srd_+3}], s{so} offen offset:{i*1024} lds")
        G.append(g)
    adv=[f"s_add_u32 s{so}, s{so}, 16384"]
    return G, adv

def pro_areads(T, st):
    b=192+(T%4)*8
    R=[]
    for s in range(2):
        for hf in range(2):
            d=b+s*4+hf*2
            if T<8:
                c,u=T>>1,T&1
                R.append(f"ds_read_b64_tr_b16 a[{d}:{d+1}], v{V_WQA+c} offset:{st*32768+s*8192+hf*1024+u*8}")
            else:
                t=(T-8)&3; up=(T-8)>>2
                R.append(f"ds_read_b64_tr_b16 a[{d}:{d+1}], v{V_WGA+t} offset:{st*32768+up*8192+s*4096+hf*512}")
    return R
def pro_breads(st):
    R=[]
    for qt in range(4):
        for s in range(2):
            d=128+st*32+(qt*2+s)*4
            R.append(f"ds_read_b128 a[{d}:{d+3}], v{V_XA+s} offset:{st*32768+qt*2048}")
    return R

def place(fills, gaps, groups):
    for g,grp in zip(gaps, groups):
        for t in grp:
            if t.startswith('s_add_u32 m0'): fills.setdefault(g-1,[]).append(t)
            else: fills.setdefault(g,[]).append(t)

def pro_chunk(c, nchunk=10):
    st=c&1
    mf=[]; fills={}
    for T in range(16):
        for qt in range(4):
            for s in range(2):
                acc = r4('v',(T*4+qt)*4) if T<8 else r4('a',((T-8)*4+qt)*4)
                mf.append(f"{MF} {acc}, {r4('a',192+(T%4)*8+s*4)}, {r4('a',128+st*32+(qt*2+s)*4)}, {acc}")
    for T in range(14):
        for k,t in enumerate(pro_areads(T+2, st)): fills.setdefault(T*8+2*k,[]).append(t)
    last = (c==nchunk-1)
    if c>=1:
        if c+1<nchunk:
            G,adv=pro_dma(st^1)
        else:
            G=[];adv=[]
            assert st==1
            for kind,slot in (('K',0),('K',1),('V',0),('V',1)):
                g,a=kv_dma(kind,slot); g[-1]=g[-1]+a; G+=g
        place(fills, [1+2*k for k in range(16)], G)
        for k,t in enumerate(adv): fills.setdefault(34+k,[]).append(t)
    if not last:
        g0=14*8
        fills.setdefault(g0,[]).extend(["s_waitcnt vmcnt(0) lgkmcnt(0)","s_barrier"])
        R=pro_breads(st^1); A0=pro_areads(0,st^1); A1=pro_areads(1,st^1)
        seq=[R[0],R[1]]+A0+R[2:]+A1
        for k,t in enumerate(seq): fills.setdefault(g0+k,[]).append(t)
    for g in fills:
        if g>=0:
            it=fills[g]
            fills[g]=[t for t in it if t.startswith('s_') and not t.startswith(f's_add_u32 s{S_KOFF}') and not t.startswith(f's_add_u32 s{S_VOFF}')]+[t for t in it if not t.startswith('s_')]+[t for t in it if t.startswith(f's_add_u32 s{S_KOFF}') or t.startswith(f's_add_u32 s{S_VOFF}')]
    return weave(mf, fills)

def prologue(p):
    for st in range(2):
        G,adv=pro_dma(st)
        for g in G:
            for t in g: p.e(t)
        for t in adv: p.e(t)
    setup2(p)
    for r in range(128): p.e(f"v_accvgpr_write_b32 a{r}, 0")
    for r in range(128): p.e(f"v_mov_b32 v{r}, 0")
    p.e("s_waitcnt vmcnt(16)\ns_barrier")
    for t in pro_breads(0)+pro_areads(0,0)+pro_areads(1,0): p.e(t)
    for c in range(10):
        for t in pro_chunk(c): p.e(t, tag=f"pro{c}")

def pro_epilogue(p):
    p.e("s_waitcnt lgkmcnt(0)\ns_barrier")
    for kind,slot in (('K',2),):
        g,a=kv_dma(kind,slot)
        for x in g:
            for t in x: p.e(t)
        for t in a: p.e(t)
    sc = math.log2(math.e)/math.sqrt(128.0)
    p.e(f"s_mov_b32 s{S_SCALE}, 0x{f2u(sc):08x}\ns_mov_b32 s{S_SCALE+1}, 0x{f2u(sc):08x}")
    for T in range(8):
        for qt in range(4):
            b=(T*4+qt)*4
            p.e(f"v_pk_mul_f32 v[{b}:{b+1}], v[{b}:{b+1}], s[{S_SCALE}:{S_SCALE+1}]\nv_pk_mul_f32 v[{b+2}:{b+3}], v[{b+2}:{b+3}], s[{S_SCALE}:{S_SCALE+1}]")
            d=V_Q+(qt*4+(T>>1))*4+(T&1)*2
            p.e(f"v_cvt_pk_bf16_f32 v{d}, v{b}, v{b+1}\nv_cvt_pk_bf16_f32 v{d+1}, v{b+2}, v{b+3}")
    for t in range(4):
        for qt in range(4):
            g=(t*4+qt)*4; u=64+g
            for r in range(4): p.e(f"v_accvgpr_read_b32 v{r}, a{g+r}\nv_accvgpr_read_b32 v{4+r}, a{u+r}")
            for r in range(4): p.e(f"v_max_f32 v{r}, 0, v{r}")
            p.e("v_pk_mul_f32 v[0:1], v[0:1], v[4:5]\nv_pk_mul_f32 v[2:3], v[2:3], v[6:7]")
            d=64+((t>>1)*4+qt)*4+(t&1)*2
            p.e(f"v_cvt_pk_bf16_f32 v{d}, v0, v1\nv_cvt_pk_bf16_f32 v{d+1}, v2, v3")
    p.e(f"v_lshlrev_b32 v{V_T}, 4, v{V_LANE}")
    p.e(f"s_lshl_b32 s{S_T0}, s{S_SIG}, 13\ns_add_u32 s{S_T0}, s{S_T0}, {128*4096}\ns_add_u32 s{S_T1}, s{S_T0}, 4096")
    for c2 in range(2):
        for qt in range(4):
            d=64+(c2*4+qt)*4
            p.e(f"buffer_store_dwordx4 {r4('v',d)}, v{V_T}, s[{S_AF}:{S_AF+3}], s{S_T0+c2} offen offset:{qt*1024}")
    for r in range(128): p.e(f"v_accvgpr_write_b32 a{r}, 0")
    for r in range(4): p.e(f"v_mov_b32 v{V_L+r}, 0")

def kreads(j, kts):
    return [f"ds_read_b128 {r4('a',A_K+(kt*4+c)*4)}, v{V_KA+c} offset:{(j&3)*16384+kt*1024}" for kt in kts for c in range(4)]
def vreads(j, dts):
    R=[]
    for dt in dts:
        for u in range(2):
            for hf in range(2):
                d=A_V+(dt*2+u)*4+hf*2
                R.append(f"ds_read_b64_tr_b16 a[{d}:{d+1}], v{V_VA+dt} offset:{(j&3)*16384+u*2048+hf*1024}")
    return R
def qk(u, zero=False):
    M=[]
    for kt in (2*u,2*u+1):
        for qt in range(4):
            d=r4('v',V_S+(kt*4+qt)*4)
            for c in range(4):
                cc = d if c else ("0" if zero else r4('v',V_NM+qt*4))
                M.append(f"{MF} {d}, {r4('a',A_K+(kt*4+c)*4)}, {r4('v',V_Q+(qt*4+c)*4)}, {cc}")
    return M
def pv(j, dts):
    M=[]
    for dt in dts:
        for qt in range(4):
            d=r4('a',(dt*4+qt)*4)
            for u in range(2):
                M.append(f"{MF} {d}, {r4('a',A_V+(dt*2+u)*4)}, {r4('v',V_P+(j&1)*32+(u*4+qt)*4)}, {d}")
    return M
def softmax(j, kt):
    X=[];A=[];C=[]
    u=kt>>1
    for qt in range(4):
        b=V_S+(kt*4+qt)*4
        for r in range(4):
            X.append(f"v_exp_f32 v{b+r}, v{b+r}")
            A.append(f"v_add_f32 v{V_L+qt}, v{V_L+qt}, v{b+r}")
        d=V_P+(j&1)*32+(u*4+qt)*4+(kt&1)*2
        C.append(f"v_cvt_pk_bf16_f32 v{d}, v{b}, v{b+1}"); C.append(f"v_cvt_pk_bf16_f32 v{d+1}, v{b+2}, v{b+3}")
    return X,A,C

def segment(mf, sm, lds, dma, pre=()):
    n=32
    fills={}
    if mf is None: mf=[None]*n
    for t in pre: fills.setdefault(0,[]).append(t)
    if sm:
        X,A,C=sm
        for k in range(16):
            fills.setdefault(2*k,[]).append(X[k])
            fills.setdefault(2*k+1,[]).append(A[k])
            if k&1: fills[2*k+1].append(C[k>>1])
    slots=sorted([4*k+1 for k in range(8)]+[3,11,19,27,7,23,15,31][:max(0,len(lds)-8)]) if len(lds)>8 else [4*k+1 for k in range(8)][:len(lds)]
    for g,t in zip(slots,lds): fills.setdefault(g,[]).append(t)
    dg=[7,23,15,31]
    for g,grp in zip(sorted(dg[:len(dma)]),dma):
        for t in grp:
            if t.startswith('s_add_u32 m0'): fills.setdefault(g-1,[]).append(t)
            elif t.startswith('s_'): fills.setdefault(g+1,[]).append(t)
            else: fills.setdefault(g,[]).append(t)
    for g in fills: fills[g]=order_gap(fills[g])
    return weave(mf,fills)

NT=32
def period(j):
    out=[]
    hasK = j<NT; hasV = 0<=j-1<NT
    kd,ka=kv_dma('K',(j+3)&3); vd,va=kv_dma('V',(j+2)&3)
    kd[-1]=kd[-1]+ka; vd[-1]=vd[-1]+va
    doK = j+3<NT+1; doV = j+2<NT
    D = (kd if doK else [])+(vd if doV else [])
    D = [D[0:2],D[2:4],D[4:6],D[6:8]]
    KR0=kreads(j,(0,1)) if hasK else []; KR1=kreads(j,(2,3)) if hasK else []
    V=vreads(j-1,range(8)) if hasV else []
    def ndma(jj):
        return (4 if jj+3<NT+1 else 0)+(4 if jj+2<NT else 0)
    if j>=1 and (hasK or hasV):
        allowed = ndma(j-1)+(ndma(j-2) if j>=2 else 0)
        pre=[f"s_waitcnt vmcnt({allowed}) lgkmcnt(0)","s_barrier"]
    else: pre=[]
    if j>=1:
        out+=segment(pv(j-2,range(4,8)) if j-2>=0 else None, softmax(j-1,2) if j-1<NT else None, KR0+V[0:4], D[0], pre)
        if j-1<NT:
            out+=segment(qk(0) if hasK else None, softmax(j-1,3), KR1+V[4:8], D[1])
    if j<NT:
        out+=segment(qk(1), softmax(j,0), V[8:20], D[2] if j>=1 else D[0]+D[1])
        out+=segment(pv(j-1,range(4)) if j>=1 else None, softmax(j,1), V[20:32], D[3] if j>=1 else D[2]+D[3])
    elif j==NT:
        out+=V[8:16]
        out+=segment(pv(j-1,range(4)), None, V[16:32], [])
    return out

def attention(p):
    p.e("s_waitcnt vmcnt(0)\ns_barrier")
    for t in kreads(0,(0,1,2,3)): p.e(t)
    for t in qk(0,zero=True): p.e(t)
    T=V_T
    for qt in range(4):
        a=V_S+qt*4; b=V_S+(4+qt)*4; m=V_NM+qt*4
        p.e(f"v_max3_f32 v{m}, v{a}, v{a+1}, v{a+2}\nv_max3_f32 v{m+1}, v{a+3}, v{b}, v{b+1}\nv_max3_f32 v{m}, v{m}, v{b+2}, v{b+3}\nv_max_f32 v{m}, v{m}, v{m+1}")
        p.e(f"v_mov_b32 v{m+1}, v{m}\nv_permlane16_swap_b32 v{m}, v{m+1}\nv_max_f32 v{m}, v{m}, v{m+1}")
        p.e(f"v_mov_b32 v{m+1}, v{m}\nv_permlane32_swap_b32 v{m}, v{m+1}\nv_max_f32 v{m}, v{m}, v{m+1}")
        p.e(f"v_sub_f32 v{m}, 0, v{m}\nv_mov_b32 v{m+1}, v{m}\nv_mov_b32 v{m+2}, v{m}\nv_mov_b32 v{m+3}, v{m}")
        for r in range(4): p.e(f"v_add_f32 v{a+r}, v{a+r}, v{m}\nv_add_f32 v{b+r}, v{b+r}, v{m}")
    for j in range(NT+2):
        for t in period(j): p.e(t, tag=f"per{j}")

def att_epilogue(p):
    T=V_T
    for qt in range(4):
        l=V_L+qt
        p.e(f"v_mov_b32 v{T}, v{l}\nv_permlane16_swap_b32 v{l}, v{T}\nv_add_f32 v{l}, v{l}, v{T}")
        p.e(f"v_mov_b32 v{T}, v{l}\nv_permlane32_swap_b32 v{l}, v{T}\nv_add_f32 v{l}, v{l}, v{T}")
        p.e(f"v_rcp_f32 v{V_NM+2*qt}, v{l}")
        p.e(f"v_mov_b32 v{V_NM+2*qt+1}, v{V_NM+2*qt}")
    p.e(f"v_lshlrev_b32 v{T}, 4, v{V_LANE}")
    p.e(f"s_lshl_b32 s{S_T0}, s{S_HEAD}, 14")
    k=0
    for c in range(4):
        for qt in range(4):
            tb=(k%4)*8; d=64+(k%8)*4; k+=1
            for h in range(2):
                a=((2*c+h)*4+qt)*4
                for r in range(4): p.e(f"v_accvgpr_read_b32 v{tb+h*4+r}, a{a+r}")
            rl=V_NM+2*qt
            for z in range(4): p.e(f"v_pk_mul_f32 v[{tb+2*z}:{tb+2*z+1}], v[{tb+2*z}:{tb+2*z+1}], v[{rl}:{rl+1}]")
            for z in range(4): p.e(f"v_cvt_pk_bf16_f32 v{d+z}, v{tb+2*z}, v{tb+2*z+1}")
            p.e(f"buffer_store_dwordx4 {r4('v',d)}, v{T}, s[{S_AF}:{S_AF+3}], s{S_T0} offen offset:{qt*1024}")
        p.e(f"s_add_u32 s{S_T0}, s{S_T0}, 4096")

def rollup(L, tags_first, ngroups, label, cnt):
    reps=[[i for i in L if i.tag in tg] for tg in tags_first]
    t0=[i.text for i in reps[0]]
    for r in reps[1:]:
        assert [i.text for i in r]==t0, f"loop bodies differ {label}"
    alltags=set(t for tg in tags_first for t in tg)
    first=next(k for k,i in enumerate(L) if i.tag in alltags)
    last=max(k for k,i in enumerate(L) if i.tag in alltags)
    assert all(i.tag in alltags for i in L[first:last+1])
    body=list(reps[0])
    km=max(k for k,i in enumerate(body) if i.kind=='mfma')
    body.insert(km+1, I(f"s_sub_u32 s{S_CNT}, s{S_CNT}, 1"))
    body.append(I(f"s_cmp_lg_u32 s{S_CNT}, 0")); body.append(I(f"s_cbranch_scc1 {label}"))
    return L[:first]+[I(f"s_mov_b32 s{S_CNT}, {cnt}"),I(".p2align 3"),I(f"{label}:")]+body+L[last+1:]

def k1():
    p=Prog()
    setup(p); prologue(p); pro_epilogue(p); attention(p); att_epilogue(p)
    p.e("K1_end:\ns_endpgm")
    rep=[]
    L=finish(p.L, report=rep)
    for r in rep:
        if r[3] and r[3] not in ('per0','per1','per32'): print("; pad in", r, file=sys.stderr)
    L=rollup(L, [[f"pro{c}",f"pro{c+1}"] for c in (1,3,5,7)], 4, "K1_pro", 4)
    L=rollup(L, [[f"per{j+k}" for k in range(4)] for j in range(2,30,4)] , 7, "K1_att", 7)
    return L

HDR = open("recurrent_scan__mha_block_cached__glu_gated_reglu__prompt.s.ref").read().split("; Override launch")[0]
def main():
    s = HDR
    s += "; @launch kernel=ln_prep_kernel grid=(438,1,1) block=(256,1,1) lds=40960\n"
    s += "; @launch kernel=attn_kernel grid=(256,1,1) block=(256,1,1) lds=131072\n"
    s += "; @launch kernel=outp_kernel grid=(256,1,1) block=(256,1,1) lds=163840\n"
    s += '.amdgcn_target "amdgcn-amd-amdhsa--gfx950"\n.text\n'
    s += head("ln_prep_kernel")+text(k0())
    s += head("attn_kernel")+text(k1())
    s += head("outp_kernel")+text(k2())
    s += kd("ln_prep_kernel",64,64)+kd("attn_kernel",512,256)+kd("outp_kernel",512,256)
    return s
if __name__=="__main__":
    open(sys.argv[1],"w").write(main())
```

```python
import re

def expand(tok):
    tok = tok.strip()
    tok = tok.lstrip('-')
    m = re.fullmatch(r'abs\((.*)\)', tok)
    if m: tok = m.group(1)
    m = re.fullmatch(r'\|(.*)\|', tok)
    if m: tok = m.group(1)
    m = re.fullmatch(r'([vas])\[(\d+):(\d+)\]', tok)
    if m: return [f"{m.group(1)}{i}" for i in range(int(m.group(2)), int(m.group(3))+1)]
    m = re.fullmatch(r'([vas])(\d+)', tok)
    if m: return [tok]
    if tok in ('vcc', 'exec', 'm0'): return [tok]
    if tok in ('exec_lo','exec_hi'): return ['exec']
    return []

TRANS = ('v_exp_f32','v_log_f32','v_rcp_f32','v_rsq_f32','v_sqrt_f32')

class I:
    __slots__ = ('text','kind','rd','wr','op','c','tag','tok')
    def __init__(self, text, tag=None):
        self.tok = None
        m = re.search(r'\s*@(\S+)\s*$', text)
        if m and not text.startswith('.'):
            self.tok = m.group(1); text = text[:m.start()]
        self.text = text; self.tag = tag
        if text.startswith('WAITTOK'):
            self.kind='waittok'; self.rd=set(); self.wr=set(); self.op='WAITTOK'; self.c=None; return
        t = text.split(';')[0].strip()
        self.c = None
        if t.endswith(':') or t.startswith('.') or not t:
            self.kind='label'; self.rd=set(); self.wr=set(); self.op=''; return
        parts = t.split(None, 1)
        op = parts[0]; self.op = op
        ops = []
        if len(parts) > 1:
            raw = [x.strip() for x in re.split(r',(?![^\[]*\])', parts[1])]
            for x in raw:
                ops.append(x.split()[0] if x.split() else x)
        R = [expand(x) for x in ops]
        flat = lambda L: set(y for x in L for y in x)
        if op.startswith('v_mfma'):
            self.kind='mfma'; self.wr=set(R[0]); self.rd=flat(R[1:3]); self.c=R[3]
        elif op.startswith('ds_read'):
            self.kind='ldsr'; self.wr=set(R[0]); self.rd=flat(R[1:])
        elif op.startswith('ds_write'):
            self.kind='ldsw'; self.wr=set(); self.rd=flat(R)
        elif op.startswith('ds_'):
            self.kind='ldsr'; self.wr=set(R[0]); self.rd=flat(R[1:])
        elif op.startswith('buffer_load') or op.startswith('global_load'):
            if re.search(r'\blds\b', t) or 'load_lds' in op:
                self.kind='dma'; self.wr=set(); self.rd=flat(R)|{'m0'}
            else:
                self.kind='vload'; self.wr=set(R[0]); self.rd=flat(R[1:])
        elif op.startswith('buffer_store') or op.startswith('global_store'):
            self.kind='vstore'; self.wr=set(); self.rd=flat(R)
        elif 'atomic' in op and not op.startswith('s_'):
            self.kind='vstore'; self.wr=set(); self.rd=flat(R)
        elif op in ('buffer_wbl2','buffer_inv'):
            self.kind='vstore'; self.wr=set(); self.rd=set()
        elif op.startswith('v_'):
            self.kind='trans' if op.replace('_e32','').replace('_e64','') in TRANS else 'valu'
            self.wr=set(R[0]); self.rd=flat(R[1:])
            if 'permlane' in op and 'swap' in op:
                self.wr=flat(R[0:2]); self.rd=flat(R[0:2])
            if op.startswith('v_fmac') or op.startswith('v_dot2c') or '_dpp' in op: self.rd |= set(R[0])
            if op.startswith('v_cndmask') and len(R)==3: self.rd |= {'vcc'}
            if op.startswith('v_add_co') or op.startswith('v_addc_co'): self.wr |= set(R[1])
        elif op.startswith('s_load') or op in('s_memtime','s_memrealtime'):
            self.kind='smem'; self.wr=set(R[0]); self.rd=flat(R[1:])
        elif op=='s_waitcnt': self.kind='wait'; self.rd=set(); self.wr=set()
        elif op=='s_nop': self.kind='nop'; self.rd=set(); self.wr=set()
        elif op=='s_barrier': self.kind='bar'; self.rd=set(); self.wr=set()
        elif op.startswith('s_cbranch') or op in('s_branch','s_endpgm'): self.kind='br'; self.rd=set(); self.wr=set()
        elif op.startswith('s_cmp'): self.kind='salu'; self.rd=flat(R); self.wr=set()
        elif op.startswith('s_'):
            self.kind='salu'; self.wr=set(R[0]) if R else set(); self.rd=flat(R[1:])
            if 'saveexec' in op: self.wr |= {'exec'}
        else:
            raise ValueError(text)
    def states(self):
        if self.kind=='label': return 0
        if self.kind=='nop': return int(self.text.split()[1])+1
        return 1

def need(p, c):
    n = 0
    isv = lambda k: k in ('valu','trans')
    crd = set(c.rd) | (set(c.c) if c.c else set())
    if isv(p.kind):
        vw = {r for r in p.wr if r[0] in 'va' and r!='vcc'}
        sw = {r for r in p.wr if r[0]=='s' or r=='vcc'}
        if c.kind=='mfma' and vw & crd: n=max(n,2)
        if isv(c.kind):
            if p.kind=='trans' and vw & c.rd: n=max(n,1)
            if ('permlane' in c.op or '_dpp' in c.op) and vw & c.rd: n=max(n,2)
            if ('readlane' in c.op or 'readfirstlane' in c.op) and vw & c.rd: n=max(n,1)
            if sw & c.rd: n=max(n,2)
        if c.kind in('vload','vstore','dma') and sw & c.rd: n=max(n,5)
        if c.kind in('salu','smem','br') and sw & c.rd: n=max(n,4)
        if c.kind=='br' and 'vcc' in sw and 'vcc' in c.op: n=max(n,5)
    if p.kind=='mfma':
        passes = 8 if '32x32' in p.op else 4
        far = {4:8, 8:12}[passes]; ovl={4:6,8:10}[passes]; war={4:3,8:7}[passes]
        if c.kind=='mfma':
            if p.wr & c.rd: n=max(n,far)
            if c.c and p.wr & set(c.c) and not (set(c.c)==p.wr and p.op==c.op): n=max(n,ovl)
            if p.wr & c.wr and not (c.c and set(c.c)==p.wr): n=max(n,ovl)
        elif isv(c.kind):
            if p.wr & (c.rd|c.wr): n=max(n,far)
            if p.c and set(p.c) & c.wr: n=max(n,war)
        elif c.kind in('vload','vstore','dma','ldsr','ldsw'):
            if p.wr & (c.rd|c.wr): n=max(n,far)
            if p.c and set(p.c) & c.wr: n=max(n,war)
    if p.kind=='salu' and 'm0' in p.wr and c.kind=='dma': n=max(n,1)
    if p.kind in('vstore','ldsw') and ('x4' in p.op or 'x3' in p.op or 'b128' in p.op) and isv(c.kind) and (p.rd & c.wr): n=max(n,2)
    return n

class Prog:
    def __init__(self): self.L=[]
    def e(self, text, tag=None):
        for t in text.split('\n'):
            t=t.strip()
            if t: self.L.append(I(t, tag))
    def ext(self, items):
        for x in items: self.L.append(x if isinstance(x,I) else I(x))

def pad_hazards(L, report=None):
    out=[]
    for ins in L:
        if ins.kind!='label':
            req=0; dist=0
            for p in reversed(out):
                if dist>=13: break
                if p.kind=='label': continue
                n=need(p,ins)
                if n>dist: req=max(req,n-dist)
                dist+=p.states()
            if req>0:
                if report is not None: report.append((len(out), req, ins.text, ins.tag))
                while req>0:
                    k=min(req,16); out.append(I(f"s_nop {k-1}", ins.tag)); req-=k
        out.append(ins)
    return out

def parse_wait(t):
    vm = re.search(r'vmcnt\((\d+)\)', t); lg = re.search(r'lgkmcnt\((\d+)\)', t)
    return (int(vm.group(1)) if vm else None, int(lg.group(1)) if lg else None)

def insert_waits(L, hoist=True, slack=6):
    out=[]
    lds=[]
    vm=[]
    for ins in L:
        if ins.tag=='slow':
            out.append(ins); continue
        if ins.kind=='waittok':
            toks=set(ins.tok.split(','))
            idx=max([k for k,x in enumerate(vm) if x[2] in toks], default=-1)
            n=len(vm)-1-idx
            assert n<=63 or idx<0, (n, ins.tok)
            n=min(n,63)
            extra=ins.text[len('WAITTOK'):].strip()
            if idx<0 and not extra: continue
            ins=I(f"s_waitcnt vmcnt({n}) {extra}".strip(), ins.tag)
        if ins.kind=='wait':
            v,l=parse_wait(ins.text)
            if l is not None: lds=lds[max(0,len(lds)-l):] if l>0 else []
            if v is not None: vm=vm[max(0,len(vm)-v):] if v>0 else []
            out.append(ins); continue
        use=set(ins.rd)|set(ins.wr)|(set(ins.c) if ins.c else set())
        for q,name,mx in ((lds,'lgkmcnt',15),(vm,'vmcnt',63)):
            idx=-1
            for k,x in enumerate(q):
                if x[1] & use: idx=k
            if idx>=0:
                pos_ins=len(out)
                if hoist and ins.kind=='mfma' and name=='lgkmcnt':
                    j=len(out)-1
                    while j>=0 and out[j].kind not in('mfma','label','br','bar'): j-=1
                    if j>=0 and out[j].kind=='mfma' and q[idx][0]<=j: pos_ins=j+1
                older=[k for k,x in enumerate(q) if x[0]<pos_ins]
                cover=idx
                if hoist and ins.kind=='mfma' and name=='lgkmcnt':
                    for k in older:
                        if k>cover:
                            nm=sum(1 for z in out[q[k][0]:pos_ins] if z.kind=='mfma')
                            if nm>=slack: cover=k
                n=len(older)-1-cover
                n=min(n,mx)
                out.insert(pos_ins, I(f"s_waitcnt {name}({n})", ins.tag if pos_ins==len(out) else out[pos_ins-1].tag))
                for qq in (lds,vm):
                    for k in range(len(qq)):
                        if qq[k][0]>=pos_ins: qq[k]=(qq[k][0]+1,)+tuple(qq[k][1:])
                newer=[x for k,x in enumerate(q) if k>=len(older)]
                keep=[q[k] for k in older][len(older)-n:] if n>0 else []
                q[:]=keep+newer
        out.append(ins)
        if ins.kind in('ldsr','ldsw'): lds.append((len(out)-1,set(ins.wr),None))
        if ins.kind in('vload','vstore','dma'): vm.append((len(out)-1,set() if ins.tok=='pf' else set(ins.wr),ins.tok))
    return out

def finish(L, report=None, **kw):
    return pad_hazards(insert_waits(L, **kw), report)

def text(L): return "\n".join(("" if i.kind=='label' else "  ")+i.text for i in L)+"\n"

def kd(name, vgpr, accum, sgpr=102):
    return f""".section .rodata,"a"
.p2align 6
.amdhsa_kernel {name}
  .amdhsa_next_free_vgpr {vgpr}
  .amdhsa_next_free_sgpr {sgpr}
  .amdhsa_accum_offset {accum}
  .amdhsa_group_segment_fixed_size 0
  .amdhsa_kernarg_size 96
  .amdhsa_user_sgpr_count 2
  .amdhsa_user_sgpr_kernarg_segment_ptr 1
  .amdhsa_system_sgpr_workgroup_id_x 1
.end_amdhsa_kernel
.text
"""
def head(name):
    return f".globl {name}\n.p2align 8\n.type {name},@function\n{name}:\n"
```

```python
from gen import *
import gen
MF = "v_mfma_f32_16x16x32_bf16"
OPT = dict(rot=True, rotC=True, dmagap=7, fine=False, align=6, earlylds=False, stamps=False, pf=False, codepf=False, LA=5, FPS=4, DRAIN=5, l2pfC=False, ldspre=True, early=True)
WS_FL=60<<20
S_DBG, S_X, S_WQ, S_WG, S_FL, S_K, S_V, S_AF = 4, 8, 12, 16, 20, 24, 28, 32
S_WAVE=36; S_HEAD=37; S_QB=38; S_SIG=39
S_XOFF=40; S_WQOFF=41; S_WGOFF=42
S_MX=43; S_MW=44
S_KOFF=46; S_VOFF=47; S_CNT=50; S_T0=51; S_T1=52; S_FOFF=53; S_SCALE=54
S_KX=56; S_KW=57; S_RA=58; S_RO=59
S_RT=70; S_CT=71; S_HL=48; S_T2=49
V_S=0; V_P=64; V_Q=128; V_NM=192; V_L=208; V_KA=212; V_VA=216; V_KD=224; V_VD=225; V_LANE=226
V_C16=227; V_C16B=228; V_POLL=229; V_PADDR=230; V_PF=231
V_XD=232; V_WQD=240; V_WGD=244; V_WQA=128; V_WGA=132; V_WQA2=192; V_WGA2=196; V_XA=200
A_K=128; A_V=192
def r4(f,b): return f"{f}[{b}:{b+3}]"
def sr(s): return f"s[{s}:{s+3}]"

def stamp(p,i):
    if OPT['stamps']: p.e(f"s_memtime s[98:99]\ns_memrealtime s[100:101]\ns_waitcnt lgkmcnt(0)\ns_mov_b32 s{72+2*i}, s98\ns_mov_b32 s{73+2*i}, s100")
def stamp_out(p,n):
    if not OPT['stamps']: return
    p.e("s_waitcnt vmcnt(0) lgkmcnt(0)")
    stamp(p,n-1)
    srd_off(p, 8, 68, 64<<20, 1<<20)
    p.e(f"s_lshl_b32 s3, s2, 2\ns_add_u32 s3, s3, s{S_WAVE}\ns_lshl_b32 s3, s3, 7\nv_mov_b32 v0, s3")
    if OPT['fine']:
        p.e(f"s_lshl_b32 s3, s3, 1\ns_add_u32 s3, s3, 0x40000\nv_lshlrev_b32 v1, 2, v{V_LANE}\nbuffer_store_dword v{V_FS}, v1, s[8:11], s3 offen")
    for i in range(n):
        p.e(f"v_mov_b32 v2, s{72+2*i}\nv_mov_b32 v3, s{73+2*i}\nbuffer_store_dwordx2 v[2:3], v0, s[8:11], 0 offen offset:{8*i}\ns_waitcnt vmcnt(0)")

V_FS=255; S_FI=96
def fine_pre():  return ["s_memtime s[98:99]"] if OPT['fine'] else []
def fine_post(): return [f"v_writelane_b32 v{V_FS}, s98, m0_FI", ] if False else ([f"s_mov_b32 s97, m0", f"s_mov_b32 m0, s{S_FI}", f"v_writelane_b32 v{V_FS}, s98, m0", f"S_mov_b32 m0, s97", f"S_add_u32 s{S_FI}, s{S_FI}, 1"] if OPT['fine'] else [])
class Gaps:
    def __init__(self, mf): self.mf=mf; self.f={}
    def put(self, g, t, post=False): self.f.setdefault(g,[]).append((t,post))
    def group(self, g, grp):
        k=next(i for i,t in enumerate(grp) if not t.startswith('s_'))
        for t in grp[:k]: self.put(max(g-1,0), t)
        self.put(g, grp[k])
        for t in grp[k+1:]: self.put(g+1, t)
    def emit(self):
        def key(x):
            t=x[0]
            if t.startswith(('s_','WAITTOK')): return 0
            if t.startswith('v_writelane'): return 0.3
            if t.startswith('S_'): return 0.6
            return 1 if t.startswith(('ds_','buffer_','global_')) else 2
        out=[]
        n=len(self.mf)
        for g in range(max([n]+[k+1 for k in self.f])):
            if g<n and self.mf[g]: out.append(self.mf[g])
            out += [x[0].replace('S_','s_',1) if x[0].startswith('S_') else x[0] for x in sorted(self.f.get(g,[]), key=key)]
        return out

def setup(p):
    p.e("s_cmp_ge_u32 s2, 256\ns_cbranch_scc1 K1_end")
    p.e("s_load_dwordx4 s[24:27], s[0:1], 8\ns_load_dwordx2 s[60:61], s[0:1], 24\ns_load_dwordx4 s[64:67], s[0:1], 48")
    p.e("s_load_dwordx2 s[68:69], s[0:1], 88\ns_load_dwordx2 s[62:63], s[0:1], 80\ns_load_dwordx2 s[92:93], s[0:1], 0\ns_load_dwordx2 s[94:95], s[0:1], 72")
    p.e(f"v_and_b32 v{V_LANE}, 63, v0\nv_lshrrev_b32 v1, 6, v0")
    p.e(f"v_readfirstlane_b32 s{S_WAVE}, v1")
    p.e(f"s_and_b32 s3, s2, 7\ns_lshr_b32 s4, s2, 3\ns_and_b32 s{S_HL}, s4, 3\ns_lshr_b32 s{S_QB}, s4, 2")
    p.e(f"s_lshl_b32 s{S_HEAD}, s3, 2\ns_add_u32 s{S_HEAD}, s{S_HEAD}, s{S_HL}")
    p.e(f"s_lshl_b32 s{S_SIG}, s{S_HL}, 3\ns_add_u32 s{S_SIG}, s{S_SIG}, s3")
    p.e(f"s_lshr_b32 s{S_RT}, s4, 2\ns_lshr_b32 s6, s3, 1\ns_lshl_b32 s6, s6, 3\ns_add_u32 s{S_RT}, s{S_RT}, s6")
    p.e(f"s_and_b32 s{S_CT}, s4, 3\ns_and_b32 s6, s3, 1\ns_lshl_b32 s6, s6, 2\ns_add_u32 s{S_CT}, s{S_CT}, s6")
    L=V_LANE
    p.e(f"v_lshrrev_b32 v1, 4, v{L}\nv_bfe_u32 v2, v{L}, 2, 2\nv_and_b32 v3, 3, v{L}\nv_and_b32 v4, 15, v{L}\nv_lshrrev_b32 v5, 3, v{L}\nv_and_b32 v6, 7, v{L}")
    p.e(f"s_lshl_b32 s6, s{S_WAVE}, 6\nv_add_u32 v7, s6, v5\nv_mul_u32_u24 v7, 1280, v7")
    p.e("v_xor_b32 v8, v6, v1\nv_xor_b32 v9, 4, v8\nv_lshl_add_u32 v8, v8, 4, v7\nv_lshl_add_u32 v9, v9, 4, v7")
    for i in range(8): p.e(f"v_add_u32 v{V_XD+i}, {i*10240-1024*(i&3)}, v{8+(i&1)}")
    p.e(f"s_lshl_b32 s6, s{S_WAVE}, 4\nv_add_u32 v7, s6, v1\nv_lshlrev_b32 v7, 13, v7")
    p.e("v_lshlrev_b32 v8, 2, v1\nv_xor_b32 v8, v4, v8\nv_lshl_add_u32 v8, v8, 4, v7")
    for i in range(4): p.e(f"v_add_u32 v{V_WQD+i}, {i*(32768-1024)}, v8")
    p.e(f"s_and_b32 s6, s{S_WAVE}, 1\ns_lshl_b32 s6, s6, 5\nv_add_u32 v7, s6, v5\nv_mul_u32_u24 v7, 3456, v7")
    p.e("v_and_b32 v8, 2, v5\nv_xor_b32 v8, v6, v8\nv_xor_b32 v9, 4, v8\nv_lshl_add_u32 v8, v8, 4, v7\nv_lshl_add_u32 v9, v9, 4, v7")
    for i in range(4): p.e(f"v_add_u32 v{V_WGD+i}, {i*(8*3456-1024)}, v{8+(i&1)}")
    if OPT['rot']:
        p.e(f"s_mul_i32 s6, s{S_HL}, 5\ns_add_u32 s6, s6, 1\ns_lshr_b32 s6, s6, 1\ns_add_u32 s6, s6, s{S_QB}\ns_add_u32 s6, s6, s3")
        for z in range(2): p.e("s_sub_u32 s7, s6, 10\ns_cmp_ge_u32 s6, 10\ns_cselect_b32 s6, s7, s6")
        p.e(f"s_mov_b32 s{S_KX}, s6\ns_mov_b32 s{S_KW}, s6")
    else: p.e(f"s_mov_b32 s{S_KX}, 0\ns_mov_b32 s{S_KW}, 0")
    p.e(f"s_lshl_b32 s{S_MX}, s{S_WAVE}, 13\ns_lshl_b32 s{S_MW}, s{S_WAVE}, 12")
    p.e("s_waitcnt lgkmcnt(0)")
    p.e(f"s_mul_i32 s6, s{S_QB}, {256*1280}")
    srd_off(p, S_X, 68, "s6", 256*1280)
    p.e(f"s_lshl_b32 s6, s{S_HEAD}, 8")
    srd_off(p, S_WQ, 60, "s6", 0)
    p.e(f"s_sub_u32 s{S_WQ+2}, {640*8192}, s6")
    p.e(f"s_cmp_lt_u32 s{S_WAVE}, 2\ns_cselect_b32 s52, s64, s66\ns_cselect_b32 s53, s65, s67")
    p.e(f"s_lshl_b32 s6, s{S_SIG}, 7")
    srd_off(p, S_WG, 52, "s6", 0)
    p.e(f"s_sub_u32 s7, {640*3456}, s6\ns_cmp_lt_u32 s{S_SIG}, 27\ns_cselect_b32 s{S_WG+2}, s7, 0")

def setup2(p):
    p.e(f"s_lshl_b32 s6, s{S_HEAD}, 19")
    srd_off(p, S_V, 26, "s6", 524288)
    srd_off(p, S_K, 24, "s6", 524288)
    p.e(f"s_lshl_b32 s6, s{S_QB}, 2\ns_add_u32 s6, s6, s{S_WAVE}\ns_mul_i32 s6, s6, {AF_RT}\ns_add_u32 s6, s6, {WS_AF}")
    srd_off(p, S_AF, 68, "s6", NSTEP*4096)
    srd_off(p, S_FL, 68, WS_FL, 4096)
    p.e(f"s_mov_b32 s{S_KOFF}, 0\ns_mov_b32 s{S_VOFF}, 0")
    p.e("v_lshl_add_u32 v7, v1, 3, v2\nv_lshlrev_b32 v8, 8, v7\nv_lshl_add_u32 v8, v3, 4, v8\nv_add_u32 v8, 0x10000, v8")
    for c in range(4): p.e(f"v_xor_b32 v9, {c}, v2\nv_lshl_add_u32 v{V_WQA+c}, v9, 6, v8\nv_add_u32 v{V_WQA2+c}, 0x10000, v{V_WQA+c}")
    p.e("v_lshlrev_b32 v8, 7, v7\nv_lshl_add_u32 v8, v3, 3, v8\nv_add_u32 v8, 0x14000, v8")
    p.e("v_lshrrev_b32 v9, 1, v2\nv_and_b32 v10, 1, v1\nv_lshl_add_u32 v10, v10, 1, v9")
    for t in range(4): p.e(f"v_xor_b32 v9, {t}, v10\nv_lshl_add_u32 v{V_WGA+t}, v9, 5, v8\nv_add_u32 v{V_WGA2+t}, 0x10000, v{V_WGA+t}")
    p.e(f"s_lshl_b32 s6, s{S_WAVE}, 6\nv_add_u32 v8, s6, v4\nv_lshlrev_b32 v8, 7, v8\nv_lshrrev_b32 v9, 1, v4\nv_xor_b32 v9, v9, v1")
    p.e(f"v_lshl_add_u32 v{V_XA}, v9, 4, v8\nv_xor_b32 v9, 4, v9\nv_lshl_add_u32 v{V_XA+1}, v9, 4, v8")
    p.e("v_lshl_add_u32 v8, v2, 4, v3\nv_lshlrev_b32 v8, 8, v8\nv_xor_b32 v9, v1, v4")
    for c in range(4): p.e(f"v_xor_b32 v10, {4*c}, v9\nv_lshl_add_u32 v{V_KA+c}, v10, 4, v8")
    p.e("v_lshl_add_u32 v8, v1, 4, v2\nv_lshlrev_b32 v8, 8, v8\nv_lshl_add_u32 v8, v3, 3, v8\nv_add_u32 v8, 0x10000, v8")
    p.e("v_and_b32 v9, 1, v1\nv_lshl_add_u32 v9, v9, 2, v2")
    for d in range(8): p.e(f"v_xor_b32 v10, {d}, v9\nv_lshl_add_u32 v{V_VA+d}, v10, 5, v8")
    p.e(f"s_lshl_b32 s6, s{S_WAVE}, 4\nv_add_u32 v8, s6, v1\nv_lshlrev_b32 v8, 8, v8")
    p.e(f"s_lshl_b32 s6, s{S_WAVE}, 2\nv_add_u32 v9, s6, v1\nv_xor_b32 v9, v9, v4\nv_lshl_add_u32 v{V_KD}, v9, 4, v8")
    p.e(f"s_and_b32 s6, s{S_WAVE}, 1\ns_lshl_b32 s6, s6, 2\nv_add_u32 v9, s6, v1\nv_lshlrev_b32 v9, 1, v9\nv_xor_b32 v9, v9, v4\nv_lshl_add_u32 v{V_VD}, v9, 4, v8")
    p.e(f"v_lshlrev_b32 v{V_C16}, 4, v{V_LANE}\nv_add_u32 v{V_C16B}, 4096, v{V_C16}")
    srd(p, S_DBG, "s62", "s63", 256)
    if OPT['fine']: p.e(f"s_mov_b32 s{S_FI}, 0\nv_mov_b32 v{V_FS}, 0")

def adv_mod(r,n): return [f"s_add_u32 s{r}, s{r}, 1", f"s_cmp_eq_u32 s{r}, {n}", f"s_cselect_b32 s{r}, 0, s{r}"]
def wslot(c): return (c+1)%3
def x_dma(c):
    G=[]
    for h in range(2):
        for i in range(4):
            g=[]
            if i==0: g.append(f"s_add_u32 m0, s{S_MX}, {(c&1)*32768+h*4096}")
            if i==0 and h==0: g.append(f"s_lshl_b32 s{S_XOFF}, s{S_KX}, 7")
            g.append(f"buffer_load_dwordx4 v{V_XD+h*4+i}, {sr(S_X)}, s{S_XOFF} offen offset:{i*1024} lds @x{c}")
            if i==1 and h==0: g+=adv_mod(S_KX,10)
            G.append(g)
    return G
def w_dma(c):
    G=[]
    o=65536+wslot(c)*32768
    for base,lo,srd_,so,st in ((V_WQD,0,S_WQ,S_WQOFF,64*8192),(V_WGD,16384,S_WG,S_WGOFF,64*3456)):
        for i in range(4):
            g=[]
            if i==0: g+= [f"s_add_u32 m0, s{S_MW}, {o+lo}", f"s_mul_i32 s{so}, s{S_KW}, {st}"]
            g.append(f"buffer_load_dwordx4 v{base+i}, {sr(srd_)}, s{so} offen offset:{i*1024} lds @w{c}")
            if i==1 and lo: g+=adv_mod(S_KW,10)
            G.append(g)
    return G
def kv_dma(kind, j):
    G=[]
    lo,vd,srd_,so = (0,V_KD,S_K,S_KOFF) if kind=='K' else (65536,V_VD,S_V,S_VOFF)
    for i in range(4):
        g=[]
        if i==0: g.append(f"s_add_u32 m0, s{S_MW}, {lo+(j&3)*16384}")
        g.append(f"buffer_load_dwordx4 v{vd}, {sr(srd_)}, s{so} offen offset:{i*1024} lds @{kind}{j}")
        if i==3: g.append(f"s_add_u32 s{so}, s{so}, 16384")
        G.append(g)
    return G
def flat(p,G):
    for g in G:
        for t in g: p.e(t)

def pro_areads(T, c):
    b=192+(T%4)*8; ws=wslot(c); o=(ws&1)*32768 if ws<2 else 0
    R=[]
    for s in range(2):
        for hf in range(2):
            d=b+s*4+hf*2
            if T<8:
                R.append(f"ds_read_b64_tr_b16 a[{d}:{d+1}], v{(V_WQA if ws<2 else V_WQA2)+(T>>1)} offset:{o+s*8192+hf*1024+(T&1)*8}")
            else:
                R.append(f"ds_read_b64_tr_b16 a[{d}:{d+1}], v{(V_WGA if ws<2 else V_WGA2)+((T-8)&3)} offset:{o+((T-8)>>2)*8192+s*4096+hf*512}")
    return R
def pro_breads(c):
    st=c&1
    return [f"ds_read_b128 {r4('a',128+st*32+(qt*2+s)*4)}, v{V_XA+s} offset:{st*32768+qt*2048}" for qt in range(4) for s in range(2)]

def pf_kv():
    o=[f"s_lshl_b32 s{S_T0}, s{S_QB}, 1\ns_lshr_b32 s{S_T1}, s{S_WAVE}, 1\ns_add_u32 s{S_T0}, s{S_T0}, s{S_T1}\ns_lshl_b32 s{S_T0}, s{S_T0}, 12"]
    return o

def pro_chunk(c):
    st=c&1
    mf=[]
    for T in range(16):
        for qt in range(4):
            for s in range(2):
                acc = r4('v',(T*4+qt)*4) if T<8 else r4('a',((T-8)*4+qt)*4)
                cc = "0" if (c==0 and s==0) else acc
                mf.append(f"{MF} {acc}, {r4('a',192+(T%4)*8+s*4)}, {r4('a',128+st*32+(qt*2+s)*4)}, {cc}")
    G=Gaps(mf)
    for T in range(14):
        for k,t in enumerate(pro_areads(T+2, c)): G.put(T*8+2*k, t)
    D=[]
    if 1<=c<=7: D+=w_dma(c+2)
    if c<=7: D+=x_dma(c+2)
    if c==9: D=kv_dma('K',0)+kv_dma('K',1)+kv_dma('V',0)+kv_dma('V',1)
    g0 = 9 if c==0 else 1
    for k,g in enumerate(D): G.group((g0+OPT['dmagap']*k)|1, g)
    if c==3 and OPT['pf']:
        for t in pf_kv()[0].split('\n'): G.put(60,t)
        G.put(63, f"buffer_load_dword v{V_PF}, v{V_PADDR}, {sr(S_K)}, s{S_T0} offen @pf")
        G.put(65, f"buffer_load_dword v{V_PF}, v{V_PADDR}, {sr(S_V)}, s{S_T0} offen @pf")
    if c<9:
        g0=14*8
        for t in fine_pre()+[f"WAITTOK lgkmcnt(0) @x{c+1},w{c+1}","s_barrier"]+fine_post(): G.put(g0,t)
        R=pro_breads(c+1); A0=pro_areads(0,c+1); A1=pro_areads(1,c+1)
        for k,t in enumerate([R[0],R[1]]+A0+R[2:]+A1): G.put(g0+k,t)
    return G.emit()

def prologue(p):
    flat(p, x_dma(0)+w_dma(0)+x_dma(1)+w_dma(1)+w_dma(2))
    if OPT['pf']:
        p.e(f"v_lshlrev_b32 v10, 7, v{V_LANE}")
        p.e(f"s_mul_i32 s6, s{S_HL}, 10\ns_add_u32 s6, s6, s{S_WAVE}\ns_lshl_b32 s6, s6, 13")
        p.e(f"buffer_load_dword v{V_PF}, v10, {sr(S_X)}, s6 offen @pf")
        p.e(f"s_add_u32 s6, s6, 32768\nbuffer_load_dword v{V_PF}, v10, {sr(S_X)}, s6 offen @pf")
        p.e(f"s_add_u32 s6, s6, 32768\nbuffer_load_dword v{V_PF}, v10, {sr(S_X)}, s6 offen @pf")
        p.e(f"s_mul_i32 s6, s{S_QB}, 80\ns_mul_i32 s7, s{S_WAVE}, 20\ns_add_u32 s6, s6, s7\ns_lshl_b32 s7, s6, 13")
        p.e(f"v_lshrrev_b32 v11, 1, v{V_LANE}\nv_lshlrev_b32 v11, 13, v11\nv_and_b32 v12, 1, v{V_LANE}\nv_lshl_add_u32 v11, v12, 7, v11")
        p.e(f"buffer_load_dword v{V_PF}, v11, {sr(S_WQ)}, s7 offen @pf")
        p.e(f"s_mul_i32 s6, s{S_QB}, 80\ns_and_b32 s7, s{S_WAVE}, 1\ns_mul_i32 s7, s7, 40\ns_add_u32 s6, s6, s7\ns_mul_i32 s7, s6, 3456")
        p.e(f"v_mul_u32_u24 v11, 3456, v{V_LANE}")
        p.e(f"buffer_load_dword v{V_PF}, v11, {sr(S_WG)}, s7 offen @pf")
        p.e(f"v_and_b32 v{V_PADDR}, 31, v{V_LANE}\nv_lshlrev_b32 v{V_PADDR}, 7, v{V_PADDR}")
    if OPT['codepf']:
        p.e("s_getpc_b64 s[6:7]")
        p.e(f"v_lshlrev_b32 v11, 7, v0")
        p.e(f"global_load_dword v{V_PF}, v11, s[6:7] @pf")
        p.e(f"v_add_u32 v11, 0x6000, v11\nglobal_load_dword v{V_PF}, v11, s[6:7] @pf")
    setup2(p)
    p.e("WAITTOK @x0,w0\ns_barrier")
    stamp(p,1)
    for t in pro_breads(0)+pro_areads(0,0)+pro_areads(1,0): p.e(t)
    for c in range(10):
        for t in pro_chunk(c): p.e(t, tag=f"pro{c}")

def pro_epilogue(p):
    p.e("s_waitcnt lgkmcnt(0)\ns_barrier")
    flat(p, kv_dma('K',2))
    sc = math.log2(math.e)/math.sqrt(128.0)
    p.e(f"s_mov_b32 s{S_SCALE}, 0x{f2u(sc):08x}\ns_mov_b32 s{S_SCALE+1}, 0x{f2u(sc):08x}")
    for T in range(8):
        for qt in range(4):
            b=(T*4+qt)*4
            p.e(f"v_pk_mul_f32 v[{b}:{b+1}], v[{b}:{b+1}], s[{S_SCALE}:{S_SCALE+1}]\nv_pk_mul_f32 v[{b+2}:{b+3}], v[{b+2}:{b+3}], s[{S_SCALE}:{S_SCALE+1}]")
            d=V_Q+(qt*4+(T>>1))*4+(T&1)*2
            p.e(f"v_cvt_pk_bf16_f32 v{d}, v{b}, v{b+1}\nv_cvt_pk_bf16_f32 v{d+1}, v{b+2}, v{b+3}")
    for t in range(4):
        for qt in range(4):
            g=(t*4+qt)*4; u=64+g
            for r in range(4): p.e(f"v_accvgpr_read_b32 v{r}, a{g+r}\nv_accvgpr_read_b32 v{4+r}, a{u+r}")
            for r in range(4): p.e(f"v_max_f32 v{r}, 0, v{r}")
            p.e("v_pk_mul_f32 v[0:1], v[0:1], v[4:5]\nv_pk_mul_f32 v[2:3], v[2:3], v[6:7]")
            d=64+((t>>1)*4+qt)*4+(t&1)*2
            p.e(f"v_cvt_pk_bf16_f32 v{d}, v0, v1\nv_cvt_pk_bf16_f32 v{d+1}, v2, v3")
    p.e(f"s_lshl_b32 s{S_T0}, s{S_SIG}, 13\ns_add_u32 s{S_T0}, s{S_T0}, {128*4096}\ns_add_u32 s{S_T1}, s{S_T0}, 4096")
    for c2 in range(2):
        for qt in range(4):
            p.e(f"buffer_store_dwordx4 {r4('v',64+(c2*4+qt)*4)}, v{V_C16}, {sr(S_AF)}, s{S_T0+c2} offen offset:{qt*1024} sc1")
    p.e(f"s_lshl_b32 s{S_T0}, s{S_QB}, 2\ns_add_u32 s{S_T0}, s{S_T0}, s{S_WAVE}\ns_lshl_b32 s{S_T0}, s{S_T0}, 5\ns_add_u32 s{S_T0}, s{S_T0}, s{S_HEAD}\ns_lshl_b32 s{S_FOFF}, s{S_T0}, 2")
    p.e(f"v_mov_b32 v0, 0\ns_mov_b64 exec, 1\nbuffer_store_dword v0, v0, {sr(S_FL)}, s{S_FOFF} offen sc1\ns_mov_b64 exec, -1")
    for r in range(64,128): p.e(f"v_accvgpr_write_b32 a{r}, 0")
    for r in range(4): p.e(f"v_mov_b32 v{V_L+r}, 0")

def kreads(j, kts):
    return [f"ds_read_b128 {r4('a',A_K+(kt*4+c)*4)}, v{V_KA+c} offset:{(j&3)*16384+kt*1024}" for kt in kts for c in range(4)]
def vreads(j, dts):
    R=[]
    for dt in dts:
        for u in range(2):
            for hf in range(2):
                d=A_V+(dt*2+u)*4+hf*2
                R.append(f"ds_read_b64_tr_b16 a[{d}:{d+1}], v{V_VA+dt} offset:{(j&3)*16384+u*2048+hf*1024}")
    return R
def qk(u, zero=False):
    M=[]
    for kt in (2*u,2*u+1):
        for qt in range(4):
            d=r4('v',V_S+(kt*4+qt)*4)
            for c in range(4):
                cc = d if c else ("0" if zero else r4('v',V_NM+qt*4))
                M.append(f"{MF} {d}, {r4('a',A_K+(kt*4+c)*4)}, {r4('v',V_Q+(qt*4+c)*4)}, {cc}")
    return M
def pv(j, dts, zero=False):
    M=[]
    for dt in dts:
        for qt in range(4):
            d=r4('a',(dt*4+qt)*4)
            for u in range(2):
                M.append(f"{MF} {d}, {r4('a',A_V+(dt*2+u)*4)}, {r4('v',V_P+(j&1)*32+(u*4+qt)*4)}, {'0' if zero and u==0 else d}")
    return M
def softmax(j, kt):
    X=[];A=[];C=[]
    u=kt>>1
    for qt in range(4):
        b=V_S+(kt*4+qt)*4
        for r in range(4):
            X.append(f"v_exp_f32 v{b+r}, v{b+r}")
            A.append(f"v_add_f32 v{V_L+qt}, v{V_L+qt}, v{b+r}")
        d=V_P+(j&1)*32+(u*4+qt)*4+(kt&1)*2
        C.append(f"v_cvt_pk_bf16_f32 v{d}, v{b}, v{b+1}"); C.append(f"v_cvt_pk_bf16_f32 v{d+1}, v{b+2}, v{b+3}")
    return X,A,C

def segment(mf, sm, lds, dma, pre=(), early_lds=False):
    if mf is None and sm:
        X,A,C=sm
        out=[t.replace('S_','s_',1) if t.startswith('S_') else t for t in pre]+list(lds)
        for g in dma: out+=g
        return out+X+A+C
    G=Gaps(mf)
    for t in pre: G.put(0,t)
    if sm:
        X,A,C=sm
        for k in range(16):
            G.put(2*k,X[k]); G.put(2*k+1,A[k])
            if k&1: G.put(2*k+1,C[k>>1])
        base=[4*k+1 for k in range(8)]
        over=[3,11,19,27,7,23,15,31]
        if early_lds: base=base[:7]; over=[3,11,19,15,7,23]
        slots=sorted(base+over[:max(0,len(lds)-len(base))])[:len(lds)] if len(lds)>len(base) else base[:len(lds)]
        dg=[7,23,15,31,3,11,19,27]
        if early_lds: dg=[27,29,31,23]
        dg=sorted(dg[:len(dma)])
    else:
        slots=[2*k for k in range(16)][:len(lds)]
        dg=[2*k+1 for k in range(16)][:len(dma)]
    assert len(slots)==len(lds) and len(dg)==len(dma)
    for g,t in zip(slots,lds): G.put(g,t)
    for g,grp in zip(dg,dma): G.group(g,grp)
    return G.emit()

NT=32
def period(j, X=None):
    X=X or {}
    out=[]
    hasK = j<NT; hasV = 0<=j-1<NT
    D = (kv_dma('K',j+3) if j+3<NT+1 else [])+(kv_dma('V',j+2) if j+2<NT else [])
    D = [D[0:2],D[2:4],D[4:6],D[6:8]]
    if j==0: D=[[],[],D[0]+D[1],D[2]+D[3]]
    for k,sg in enumerate("ABCD"): D[k]=D[k]+X.get(sg,[])
    KR0=kreads(j,(0,1)) if hasK else []; KR1=kreads(j,(2,3)) if hasK else []
    V=vreads(j-1,range(8)) if hasV else []
    pre=fine_pre()+[f"WAITTOK lgkmcnt(0) @K{j},V{j-1}","s_barrier"]+fine_post() if (j>=1 and (hasK or hasV)) else []
    if j>=1:
        out+=segment(pv(j-2,range(4,8)) if j-2>=0 else None, softmax(j-1,2) if j-1<NT else None, KR0+V[0:4], D[0], pre)
        out+=X.get('mid',[])
        if j-1<NT:
            out+=segment(qk(0) if hasK else None, softmax(j-1,3), KR1+V[4:8]+([] if hasK else V[8:16]), D[1])
    if j<NT:
        out+=segment(qk(1), softmax(j,0), V[8:20], D[2])
        out+=segment(pv(j-1,range(4),zero=(j==1)) if j>=1 else None, softmax(j,1), V[20:32], D[3], early_lds=OPT['earlylds'])
    elif j==NT:
        out+=segment(pv(j-1,range(4)), None, V[16:32], D[3])
    return out

def att_start(p):
    p.e("s_waitcnt vmcnt(0)\ns_barrier")
    p.e(f"s_cmp_lg_u32 s{S_WAVE}, 0\ns_cbranch_scc1 K1_noarr")
    p.e(f"s_lshl_b32 s{S_T0}, s{S_QB}, 5\nv_mov_b32 v0, 0\nv_mov_b32 v1, 1\ns_mov_b64 exec, 1\nbuffer_atomic_add v1, v0, {sr(S_DBG)}, s{S_T0} offen sc1\ns_mov_b64 exec, -1", tag='slow')
    p.e("K1_noarr:")
    for t in kreads(0,(0,1,2,3)): p.e(t)
    for t in qk(0,zero=True): p.e(t)
    for qt in range(4):
        a=V_S+qt*4; b=V_S+(4+qt)*4; m=V_NM+qt*4
        p.e(f"v_max3_f32 v{m}, v{a}, v{a+1}, v{a+2}\nv_max3_f32 v{m+1}, v{a+3}, v{b}, v{b+1}\nv_max3_f32 v{m}, v{m}, v{b+2}, v{b+3}\nv_max_f32 v{m}, v{m}, v{m+1}")
        p.e(f"v_mov_b32 v{m+1}, v{m}\nv_permlane16_swap_b32 v{m}, v{m+1}\nv_max_f32 v{m}, v{m}, v{m+1}")
        p.e(f"v_mov_b32 v{m+1}, v{m}\nv_permlane32_swap_b32 v{m}, v{m+1}\nv_max_f32 v{m}, v{m}, v{m+1}")
        p.e(f"v_sub_f32 v{m}, 0, v{m}\nv_mov_b32 v{m+1}, v{m}\nv_mov_b32 v{m+2}, v{m}\nv_mov_b32 v{m+3}, v{m}")
        for r in range(4): p.e(f"v_add_f32 v{a+r}, v{a+r}, v{m}\nv_add_f32 v{b+r}, v{b+r}, v{m}")

S_CA, S_CW, S_XI, S_OUT = 8, 12, 16, 24
S_AO=40; S_WO=41; S_AD=42; S_WD=43; S_LA=45; S_LW=55; S_SPIN=54
def spin(label, srd_, soff, expect):
    o=[(f"s_mov_b32 s{S_SPIN}, 0x100000",None),(f"v_mov_b32 v{V_POLL}, v{V_POLL}",None),(f"{label}:",None),
       (f"v_cmp_ne_u32 vcc, {expect}, v{V_POLL}",None),(f"s_cbranch_vccz {label}_ok",None),
       ("s_sleep 2",'slow'),(f"buffer_load_dword v{V_POLL}, v{V_PADDR}, {sr(srd_)}, {soff} offen sc1",'slow'),
       (f"s_sub_u32 s{S_SPIN}, s{S_SPIN}, 1",'slow'),(f"s_cmp_lg_u32 s{S_SPIN}, 0",'slow'),("s_waitcnt vmcnt(0)",'slow'),(f"s_cbranch_scc1 {label}",'slow'),
       (f"{label}_ok:",None)]
    return [I(t,g) for t,g in o]

def c_setup(p):
    p.e(f"s_mul_i32 s{S_T0}, s{S_RT}, {AF_RT}\ns_add_u32 s{S_T0}, s{S_T0}, {WS_AF}")
    srd_off(p, S_CA, 68, f"s{S_T0}", NSTEP*4096)
    p.e(f"s_mul_i32 s{S_T0}, s{S_CT}, {WF_CT}\ns_add_u32 s{S_T0}, s{S_T0}, {WS_WF}")
    srd_off(p, S_CW, 68, f"s{S_T0}", NSTEP*5120)
    srd(p, S_XI, "s92", "s93", 2048*1280)
    p.e(f"s_lshl_b32 s{S_AO}, s{S_WAVE}, 17\ns_mul_i32 s{S_WO}, s{S_WAVE}, {32*5120}")
    p.e(f"s_mul_i32 s{S_T0}, s{S_WAVE}, 14\ns_add_u32 s{S_T0}, s{S_T0}, 128\ns_lshl_b32 s{S_AD}, s{S_T0}, 12\ns_mul_i32 s{S_WD}, s{S_T0}, 5120")
    p.e(f"v_and_b32 v{V_PADDR}, 7, v{V_LANE}\nv_lshlrev_b32 v{V_PADDR}, 5, v{V_PADDR}")
    if OPT['rotC']:
        p.e(f"s_lshl_b32 s{S_RO}, s{S_CT}, 1\ns_add_u32 s{S_RO}, s{S_RO}, s{S_RT}\ns_and_b32 s{S_RO}, s{S_RO}, 7\ns_mul_i32 s{S_RA}, s{S_RO}, 7\ns_lshr_b32 s{S_RA}, s{S_RA}, 2")
    else: p.e(f"s_mov_b32 s{S_RO}, 0\ns_mov_b32 s{S_RA}, 0")

PRE_STRIPES={('A',0):16384, ('W',0):65536, ('A',1):131072, ('W',1):131072+16384, ('A',2):32768, ('W',2):65536+16384}
class CState:
    def __init__(self):
        self.free=[]; self.A={}; self.W={}
    def off(self,t,dst,bd,bo,stride):
        if t<14:
            return [f"s_add_u32 s{dst}, s{S_RA}, {t}", f"s_sub_u32 s{S_T2}, s{dst}, 14", f"s_cmp_ge_u32 s{dst}, 14", f"s_cselect_b32 s{dst}, s{S_T2}, s{dst}",
                    f"s_mul_i32 s{dst}, s{dst}, {stride}", f"s_add_u32 s{dst}, s{dst}, s{bd}"]
        u=t-14
        return [f"s_add_u32 s{dst}, s{S_RO}, {u&7}", f"s_and_b32 s{dst}, s{dst}, 7", f"s_add_u32 s{dst}, s{dst}, {u&~7}",
                f"s_mul_i32 s{dst}, s{dst}, {stride}", f"s_add_u32 s{dst}, s{dst}, s{bo}"]
    def offA(self,t): return self.off(t,S_LA,S_AD,S_AO,4096)
    def offW(self,t): return self.off(t,S_LW,S_WD,S_WO,5120)
    def loadA(self, t):
        fr=[self.free.pop(0) for _ in range(4)]; self.A[t]=fr
        G=[[f"buffer_load_dwordx4 {fr[i]}, v{V_C16}, {sr(S_CA)}, s{S_LA} offen offset:{i*1024} sc1"] for i in range(4)]
        G[0]=self.offA(t)+G[0]; return G
    def loadW(self, t, only5=False):
        if only5:
            fr=[None]*4+[self.free.pop(0)]; G=[]
        else:
            fr=[self.free.pop(0) for _ in range(5)]
            G=[[f"buffer_load_dwordx4 {fr[i]}, v{V_C16}, {sr(S_CW)}, s{S_LW} offen offset:{i*1024} sc1"] for i in range(4)]
        self.W[t]=fr
        G+=[[f"buffer_load_dwordx4 {fr[4]}, v{V_C16B}, {sr(S_CW)}, s{S_LW} offen sc1"]]
        G[0]=self.offW(t)+G[0]; return G
    def pre_dma(self, kind, t):
        srd_,so,off = (S_CA,S_LA,self.offA(t)) if kind=='A' else (S_CW,S_LW,self.offW(t))
        G=[[f"buffer_load_dwordx4 v{V_C16}, {sr(srd_)}, s{so} offen offset:{i*1024} sc1 lds @p{kind}{t}"] for i in range(4)]
        G[0]=[f"s_add_u32 m0, s{S_MW}, {PRE_STRIPES[(kind,t)]}"]+off+G[0]
        return G
    def pre_read(self, t, va):
        o=[f"WAITTOK @pA{t},pW{t}"]
        self.A[t]=[self.free.pop(0) for _ in range(4)]
        for i in range(4): self.W[t][i]=self.free.pop(0)
        for kind,fr in (('W',self.W[t]),('A',self.A[t])):
            b=PRE_STRIPES[(kind,t)]
            for i in range(4): o.append(f"ds_read_b128 {fr[i]}, v{va[b>>16]} offset:{(b&65535)+i*1024}")
        return o
    def step(self, t):
        ab = 128 if t<14 else 0
        M=[]
        for n in range(5):
            for q in range(4):
                d=r4('a',ab+(q*5+n)*4)
                M.append(f"{MF} {d}, {self.W[t][n]}, {self.A[t][q]}, {'0' if t in (0,14) else d}")
        self.free += self.A.pop(t)+self.W.pop(t)
        return M

def o_frag(k):
    c,qt=k>>2,k&3
    o=[]; tb=200; d=212+(k%3)*4
    for h in range(2):
        a=((2*c+h)*4+qt)*4
        for r in range(4): o.append(f"v_accvgpr_read_b32 v{tb+h*4+r}, a{a+r}")
    rl=V_NM+2*qt
    for z in range(4): o.append(f"v_pk_mul_f32 v[{tb+2*z}:{tb+2*z+1}], v[{tb+2*z}:{tb+2*z+1}], v[{rl}:{rl+1}]")
    for z in range(4): o.append(f"v_cvt_pk_bf16_f32 v{d+z}, v{tb+2*z}, v{tb+2*z+1}")
    if qt==0: o+= [f"s_lshl_b32 s{S_T0}, s{S_HEAD}, 14", f"s_add_u32 s{S_T0}, s{S_T0}, {c*4096}"]
    o.append(f"buffer_store_dwordx4 {r4('v',d)}, v{V_C16}, {sr(S_AF)}, s{S_T0} offen offset:{qt*1024} sc1")
    return o

def l2pf_groups():
    G=[]
    G.append([f"s_and_b32 s{S_T0}, s{S_CT}, 3", f"s_mul_i32 s{S_T0}, s{S_T0}, 7", f"s_add_u32 s{S_T0}, s{S_T0}, s{S_WAVE}", f"s_lshl_b32 s{S_T0}, s{S_T0}, 13", f"s_add_u32 s{S_T0}, s{S_T0}, {128*4096}",
              f"buffer_load_dword v{V_PF}, v{V_PADDR}, {sr(S_CA)}, s{S_T0} offen sc1 @pf"])
    G.append([f"s_add_u32 s{S_T0}, s{S_T0}, 32768", f"buffer_load_dword v{V_PF}, v{V_PADDR}, {sr(S_CA)}, s{S_T0} offen sc1 @pf"])
    G.append([f"s_and_b32 s{S_T1}, s{S_RT}, 7", f"s_lshl_b32 s{S_T1}, s{S_T1}, 2", f"s_add_u32 s{S_T1}, s{S_T1}, s{S_WAVE}", f"s_lshl_b32 s{S_T1}, s{S_T1}, 13", f"s_add_u32 s{S_T0}, s{S_T1}, {80*8192+16384}",
              f"buffer_load_dword v{V_PF}, v{V_PADDR}, {sr(S_CW)}, s{S_T0} offen sc1 @pf"])
    G.append([f"s_and_b32 s{S_T1}, s{S_RT}, 7", f"s_lshl_b32 s{S_T1}, s{S_T1}, 13", f"s_add_u32 s{S_T0}, s{S_T1}, s{S_WO}",
              f"buffer_load_dword v{V_PF}, v{V_PADDR}, {sr(S_CW)}, s{S_T0} offen sc1 @pf"])
    return G

def attention_and_c(p):
    LA,FPS,DRAIN=OPT['LA'],OPT['FPS'],OPT['DRAIN']
    C=CState()
    c_setup(p)
    att_start(p)
    stamp(p,4)
    for j in range(30):
        for t in period(j): p.e(t, tag=f"per{j}")
    X={'A':[[f"buffer_load_dword v{V_POLL}, v{V_PADDR}, {sr(S_DBG)}, 0 offen sc1"]],
       'mid':spin("K1_spinA",S_DBG,"0",32)+[f"v_lshlrev_b32 v{V_PADDR}, 7, v{V_LANE}"]}
    npre=3 if OPT['ldspre'] else 0
    if npre:
        X['B']=C.pre_dma('W',0); X['C']=C.pre_dma('A',0); X['D']=C.pre_dma('W',1)
    if OPT['l2pfC']: X['D']=l2pf_groups()
    p.ext(period(30,X))
    X={}
    if npre:
        Z=C.pre_dma('A',1)+C.pre_dma('W',2)+C.pre_dma('A',2)
        X={'A':Z[0:3],'B':Z[3:6],'C':Z[6:9],'D':Z[9:12]}
    p.ext(period(31,X))
    C.free=[r4('v',b) for b in range(232,252 if OPT['fine'] else 256,4)]+([r4('v',64)] if OPT['fine'] else [])+[r4('v',b) for b in range(128,192,4)]+[r4('v',b) for b in range(0,32,4)]
    E=[]
    nw=na=npre
    for t in range(npre): E+=C.loadW(t,only5=True)
    if OPT['early']:
        for t in range(npre,npre+3): E+=C.loadW(t)+C.loadA(t)
        nw=na=npre+3
    p.ext(period(32,{'D':E[:16]}))
    p.ext(period(33,{'A':E[16:]}))
    stamp(p,5)
    C.free+=[r4('v',b) for b in range(32,128,4) if not (OPT['fine'] and b==64)]+[r4('a',b) for b in range(208,256,4)]
    p.e(f"v_add_u32 v224, s{S_MW}, v{V_C16}\nv_add_u32 v225, 0x10000, v224\nv_add_u32 v{V_PF}, 0x20000, v224")
    va={0:224,1:225,2:V_PF}
    if npre:
        if OPT['l2pfC']:
            p.e("WAITTOK @pf")
            p.L.insert(len(p.L)-4, p.L.pop())
        for t in C.pre_read(0,va): p.e(t)
    while na<npre+LA and len(C.free)>=9+16:
        flat(p,C.loadW(nw)+C.loadA(na)); nw+=1; na+=1
    for qt in range(4):
        l=V_L+qt; T=200
        p.e(f"v_mov_b32 v{T}, v{l}\nv_permlane16_swap_b32 v{l}, v{T}\nv_add_f32 v{l}, v{l}, v{T}")
        p.e(f"v_mov_b32 v{T}, v{l}\nv_permlane32_swap_b32 v{l}, v{T}\nv_add_f32 v{l}, v{l}, v{T}")
        p.e(f"v_rcp_f32 v{V_NM+2*qt}, v{l}")
        p.e(f"v_mov_b32 v{V_NM+2*qt+1}, v{V_NM+2*qt}")
    p.e(f"v_and_b32 v{V_PADDR}, 31, v{V_LANE}\nv_lshlrev_b32 v{V_PADDR}, 2, v{V_PADDR}\ns_lshl_b32 s{S_T1}, s{S_RT}, 7")
    kf=0
    for t in range(46):
        if t+1<npre:
            for x in C.pre_read(t+1,va): p.e(x)
        while kf<16 and kf<(t+1)*FPS:
            for x in o_frag(kf): p.e(x)
            kf+=1
            if kf==16: C.free += [r4('a',b) for b in range(80,128,4)]
        if t==DRAIN:
            p.e(f"s_waitcnt vmcnt(0)\nv_mov_b32 v200, 0\nv_mov_b32 v201, 1\ns_mov_b64 exec, 1\nbuffer_store_dword v201, v200, {sr(S_FL)}, s{S_FOFF} offen sc1\ns_mov_b64 exec, -1")
            stamp(p,6)
        if t==14:
            p.e("s_barrier")
            p.e(f"s_mul_i32 s{S_T0}, s{S_WAVE}, 5120\nv_add_u32 v200, s{S_T0}, v{V_C16}\nv_add_u32 v201, 0x14000, v200\nv_add_u32 v205, 40960, v200\nv_add_u32 v206, 40960, v201")
            p.ext(spin("K1_spinO",S_FL,f"s{S_T1}",1))
            stamp(p,7)
            while na<14+LA:
                flat(p,C.loadA(na)); na+=1
            for q in range(4):
                for n in range(5):
                    p.e(f"ds_write_b128 v{201 if q<2 else 206}, {r4('a',128+(q*5+n)*4)} offset:{(q&1)*20480+n*1024}")
            p.e(f"s_lshl_b32 s{S_T0}, s{S_RT}, 6\ns_lshl_b32 s{S_T1}, s{S_WAVE}, 4\ns_add_u32 s{S_T0}, s{S_T0}, s{S_T1}")
            p.e(f"v_and_b32 v202, 15, v{V_LANE}\nv_add_u32 v202, s{S_T0}, v202\nv_mul_u32_u24 v202, 1280, v202")
            p.e(f"v_lshrrev_b32 v203, 4, v{V_LANE}\nv_mul_u32_u24 v203, 40, v203\nv_add_u32 v202, v202, v203\ns_mul_i32 s{S_T1}, s{S_CT}, 160\nv_add_u32 v202, s{S_T1}, v202")
            for n in range(5): p.e(f"buffer_load_dwordx2 v[{212+2*n}:{213+2*n}], v202, {sr(S_XI)}, 0 offen offset:{8*n}")
            srd(p, S_OUT, "s94", "s95", 2048*1280)
            p.e(f"s_mul_i32 s{S_T0}, s{S_WAVE}, 20480\nv_add_u32 v203, s{S_T0}, v{V_C16}\nv_add_u32 v204, 0x14000, v203")
        if t==16:
            p.e("s_waitcnt lgkmcnt(0)\ns_barrier")
            for n in range(5):
                for src in range(4): p.e(f"ds_read_b128 {r4('a',128+(n*4+src)*4)}, v204 offset:{src*5120+n*1024}")
        if 17<=t<22:
            n=t-17
            for r in range(4):
                for src in range(4): p.e(f"v_accvgpr_read_b32 v{192+src}, a{128+(n*4+src)*4+r}")
                p.e("v_add_f32 v192, v192, v193\nv_add_f32 v194, v194, v195\nv_add_f32 v192, v192, v194")
                p.e(f"v_mul_f32 v193, 0x{f2u(-math.log2(math.e)):08x}, v192\nv_exp_f32 v193, v193\nv_add_f32 v193, 1.0, v193\nv_rcp_f32 v193, v193\nv_mul_f32 v192, v192, v193")
                p.e(f"v_accvgpr_write_b32 a{128+n*16+r}, v192")
        for x in C.step(t): p.e(x)
        if t==12: p.e(f"buffer_load_dword v{V_POLL}, v{V_PADDR}, {sr(S_FL)}, s{S_T1} offen sc1")
        if t>=14:
            if nw<46: flat(p,C.loadW(nw)); nw+=1
            if na<46: flat(p,C.loadA(na)); na+=1
        else:
            budget=9
            while budget>0:
                if na<14 and len(C.free)>=9+(8 if t+2<npre else 0):
                    flat(p,C.loadW(nw)+C.loadA(na)); nw+=1; na+=1; budget-=9
                elif na>=14 and len(C.free)>=5+4*LA:
                    flat(p,C.loadW(nw)); nw+=1; budget-=5
                else: break
    stamp(p,8)
    for q in range(4):
        for n in range(5):
            p.e(f"ds_write_b128 v{200 if q<2 else 205}, {r4('a',(q*5+n)*4)} offset:{(q&1)*20480+n*1024}")
    for i in range(10): p.e(f"v_lshlrev_b32 v{100+2*i}, 16, v{212+i}\nv_and_b32 v{101+2*i}, 0xffff0000, v{212+i}")
    for n in range(5):
        for r in range(4): p.e(f"v_accvgpr_read_b32 v{120+n*4+r}, a{128+n*16+r}")
    p.e("s_waitcnt lgkmcnt(0)\ns_barrier")
    for n in range(5):
        for src in range(4): p.e(f"ds_read_b128 {r4('v',(n*4+src)*4)}, v203 offset:{src*5120+n*1024}")
    for n in range(5):
        b=n*16
        for z in (0,2):
            p.e(f"v_pk_add_f32 v[{b+z}:{b+z+1}], v[{b+z}:{b+z+1}], v[{b+4+z}:{b+5+z}]\nv_pk_add_f32 v[{b+8+z}:{b+9+z}], v[{b+8+z}:{b+9+z}], v[{b+12+z}:{b+13+z}]")
            p.e(f"v_pk_add_f32 v[{b+z}:{b+z+1}], v[{b+z}:{b+z+1}], v[{b+8+z}:{b+9+z}]")
            p.e(f"v_pk_fma_f32 v[{100+n*4+z}:{101+n*4+z}], v[{b+z}:{b+z+1}], v[{120+n*4+z}:{121+n*4+z}], v[{100+n*4+z}:{101+n*4+z}]")
            p.e(f"v_cvt_pk_bf16_f32 v{140+n*2+z//2}, v{100+n*4+z}, v{101+n*4+z}")
        p.e(f"buffer_store_dwordx2 v[{140+2*n}:{141+2*n}], v202, {sr(S_OUT)}, 0 offen offset:{8*n}")

def rollup(L, tags_first, label):
    reps=[[i for i in L if i.tag in tg] for tg in tags_first]
    t0=[i.text for i in reps[0]]
    for r in reps[1:]:
        assert [i.text for i in r]==t0, f"loop bodies differ {label}"
    alltags=set(t for tg in tags_first for t in tg)
    first=next(k for k,i in enumerate(L) if i.tag in alltags)
    last=max(k for k,i in enumerate(L) if i.tag in alltags)
    assert all(i.tag in alltags for i in L[first:last+1])
    body=list(reps[0])
    mk=[k for k,i in enumerate(body) if i.kind=='mfma']
    body.insert(mk[-1]+1, I(f"s_cmp_lg_u32 s{S_CNT}, 0"))
    body.insert(mk[-2]+1, I(f"s_sub_u32 s{S_CNT}, s{S_CNT}, 1"))
    assert not any(i.kind=='salu' for i in body[mk[-1]+3:]), [i.text for i in body[mk[-1]:]]
    body.append(I(f"s_cbranch_scc1 {label}"))
    return L[:first]+[I(f"s_mov_b32 s{S_CNT}, {len(reps)}"),I(f".p2align {OPT['align']}"),I(f"{label}:")]+body+L[last+1:]

def k1():
    p=Prog()
    setup(p); stamp(p,0); prologue(p); stamp(p,2); pro_epilogue(p); stamp(p,3); attention_and_c(p); stamp_out(p,10)
    p.e("K1_end:\ns_endpgm")
    rep=[]
    L=finish(p.L, report=rep)
    for r in rep:
        if r[3] and r[3]!='slow': print("; pad in", r, file=sys.stderr)
    L=rollup(L, [[f"per{j+k}" for k in range(4)] for j in range(2,30,4)], "K1_att")
    return L

HDR = open("recurrent_scan__mha_block_cached__glu_gated_reglu__prompt.s.ref").read().split("; Override launch")[0]
def main():
    s = HDR
    s += "; @launch kernel=ln_prep_kernel grid=(438,1,1) block=(256,1,1) lds=40960\n"
    s += "; @launch kernel=attn_kernel grid=(256,1,1) block=(256,1,1) lds=163840\n"
    s += '.amdgcn_target "amdgcn-amd-amdhsa--gfx950"\n.text\n'
    s += head("ln_prep_kernel")+text(k0())
    s += head("attn_kernel")+text(k1())
    s += ".p2align 8\n.fill 2048, 4, 0xbf800000\n"
    s += kd("ln_prep_kernel",64,64)+kd("attn_kernel",512,256)
    return s
if __name__=="__main__":
    for a in sys.argv[2:]:
        k,v=a.split("="); OPT[k]=eval(v)
    open(sys.argv[1],"w").write(main())
```

```python
from gen import *
import gen
MF = "v_mfma_f32_16x16x32_bf16"
OPT = dict(dbgst=False, rot=False, rotC=True, dmagap=7, fine=False, align=6, earlylds=False, stamps=False, pf=True, codepf=False, LA=5, FPS=4, DRAIN=5, l2pfC=False, ldspre=True, early=True)
WS_FL=60<<20
WS_ST=61<<20
LDS_RL=131072
LDS_CS=131072+6144
S_DBG, S_X, S_WQ, S_WG, S_FL, S_K, S_V, S_AF = 4, 8, 12, 16, 20, 24, 28, 32
S_WAVE=36; S_HEAD=37; S_QB=38; S_SIG=39
S_XOFF=40; S_WQOFF=41; S_WGOFF=42
S_MX=43; S_MW=44
S_KOFF=46; S_VOFF=47; S_CNT=50; S_T0=51; S_T1=52; S_FOFF=53; S_SCALE=54
S_KX=56; S_KW=57; S_RA=58; S_RO=59
S_RT=70; S_CT=71; S_HL=48; S_T2=49
V_S=0; V_P=64; V_Q=128; V_NM=192; V_L=208; V_KA=212; V_VA=216; V_KD=224; V_VD=225; V_LANE=226
V_C16=227; V_C16B=228; V_POLL=229; V_PADDR=230; V_PF=231
V_XD=232; V_WQD=240; V_WGD=244; V_WQA=128; V_WQA2=132; V_WGA=136; V_WGA2=144; V_RL=152; V_CS=192; V_XA=208; V_ONES=248; V_RLA=210; V_RLW=211; V_ST=232; V_CSA=240
S_RS=72; S_RD=76; S_STT=80
S_RO0=84; S_RO1=85
A_K=128; A_V=192
def r4(f,b): return f"{f}[{b}:{b+3}]"
def sr(s): return f"s[{s}:{s+3}]"

def stamp(p,i):
    if OPT['stamps']: p.e(f"s_memtime s[98:99]\ns_memrealtime s[100:101]\ns_waitcnt lgkmcnt(0)\nv_writelane_b32 v254, s98, {2*i}\nv_writelane_b32 v254, s100, {2*i+1}")
def stamp_out(p,n):
    if not OPT['stamps']: return
    p.e("s_waitcnt vmcnt(0) lgkmcnt(0)")
    stamp(p,n-1)
    srd_off(p, 8, 68, 64<<20, 1<<20)
    p.e(f"s_lshl_b32 s3, s2, 2\ns_add_u32 s3, s3, s{S_WAVE}\ns_lshl_b32 s3, s3, 7\nv_mov_b32 v0, s3")
    p.e(f"v_lshlrev_b32 v1, 2, v{V_LANE}\ns_mov_b64 exec, 0xffffffff\nbuffer_store_dword v254, v1, s[8:11], s3 offen\ns_mov_b64 exec, -1")
    if OPT['fine']:
        p.e(f"s_lshl_b32 s3, s3, 1\ns_add_u32 s3, s3, 0x40000\nv_lshlrev_b32 v1, 2, v{V_LANE}\nbuffer_store_dword v{V_FS}, v1, s[8:11], s3 offen")

V_FS=255; S_FI=96
def fine_pre():  return ["s_memtime s[98:99]"] if OPT['fine'] else []
def fine_post(): return [f"v_writelane_b32 v{V_FS}, s98, m0_FI", ] if False else ([f"s_mov_b32 s97, m0", f"s_mov_b32 m0, s{S_FI}", f"v_writelane_b32 v{V_FS}, s98, m0", f"S_mov_b32 m0, s97", f"S_add_u32 s{S_FI}, s{S_FI}, 1"] if OPT['fine'] else [])
class Gaps:
    def __init__(self, mf): self.mf=mf; self.f={}
    def put(self, g, t, post=False): self.f.setdefault(g,[]).append((t,post))
    def group(self, g, grp):
        k=next(i for i,t in enumerate(grp) if not t.startswith('s_'))
        for t in grp[:k]: self.put(max(g-1,0), t)
        self.put(g, grp[k])
        for t in grp[k+1:]: self.put(g+1, t)
    def emit(self):
        def key(x):
            t=x[0]
            if t.startswith(('s_','WAITTOK')): return 0
            if t.startswith('v_writelane'): return 0.3
            if t.startswith('S_'): return 0.6
            return 1 if t.startswith(('ds_','buffer_','global_')) else 2
        out=[]
        n=len(self.mf)
        for g in range(max([n]+[k+1 for k in self.f])):
            if g<n and self.mf[g]: out.append(self.mf[g])
            out += [x[0].replace('S_','s_',1) if x[0].startswith('S_') else x[0] for x in sorted(self.f.get(g,[]), key=key)]
        return out

def setup(p):
    p.e("s_cmp_ge_u32 s2, 256\ns_cbranch_scc1 K1_end")
    p.e("s_load_dwordx4 s[24:27], s[0:1], 8\ns_load_dwordx2 s[60:61], s[0:1], 24\ns_load_dwordx4 s[64:67], s[0:1], 48")
    p.e("s_load_dwordx2 s[68:69], s[0:1], 88\ns_load_dwordx2 s[62:63], s[0:1], 80\ns_load_dwordx2 s[92:93], s[0:1], 0\ns_load_dwordx2 s[94:95], s[0:1], 72")
    p.e("s_load_dwordx2 s[86:87], s[0:1], 32\ns_load_dwordx2 s[88:89], s[0:1], 64")
    p.e(f"v_and_b32 v{V_LANE}, 63, v0\nv_lshrrev_b32 v1, 6, v0")
    p.e(f"v_readfirstlane_b32 s{S_WAVE}, v1")
    p.e(f"s_and_b32 s3, s2, 7\ns_lshr_b32 s4, s2, 3\ns_and_b32 s{S_HL}, s4, 3\ns_lshr_b32 s{S_QB}, s4, 2")
    p.e(f"s_lshl_b32 s{S_HEAD}, s3, 2\ns_add_u32 s{S_HEAD}, s{S_HEAD}, s{S_HL}")
    p.e(f"s_lshl_b32 s{S_SIG}, s{S_HL}, 3\ns_add_u32 s{S_SIG}, s{S_SIG}, s3")
    p.e(f"s_lshr_b32 s{S_RT}, s4, 2\ns_lshr_b32 s6, s3, 1\ns_lshl_b32 s6, s6, 3\ns_add_u32 s{S_RT}, s{S_RT}, s6")
    p.e(f"s_and_b32 s{S_CT}, s4, 3\ns_and_b32 s6, s3, 1\ns_lshl_b32 s6, s6, 2\ns_add_u32 s{S_CT}, s{S_CT}, s6")
    L=V_LANE
    p.e(f"v_lshrrev_b32 v1, 4, v{L}\nv_bfe_u32 v2, v{L}, 2, 2\nv_and_b32 v3, 3, v{L}\nv_and_b32 v4, 15, v{L}\nv_lshrrev_b32 v5, 3, v{L}\nv_and_b32 v6, 7, v{L}")
    p.e(f"s_lshl_b32 s6, s{S_WAVE}, 6\nv_add_u32 v7, s6, v5\nv_mul_u32_u24 v7, 1280, v7")
    p.e("v_xor_b32 v8, v6, v1\nv_xor_b32 v9, 4, v8\nv_lshl_add_u32 v8, v8, 4, v7\nv_lshl_add_u32 v9, v9, 4, v7")
    for i in range(8): p.e(f"v_add_u32 v{V_XD+i}, {i*10240-1024*(i&3)}, v{8+(i&1)}")
    p.e(f"s_lshl_b32 s6, s{S_WAVE}, 4\nv_add_u32 v7, s6, v1\nv_lshlrev_b32 v7, 13, v7")
    p.e("v_lshlrev_b32 v8, 2, v1\nv_xor_b32 v8, v4, v8\nv_lshl_add_u32 v8, v8, 4, v7")
    for i in range(4): p.e(f"v_add_u32 v{V_WQD+i}, {i*(32768-1024)}, v8")
    p.e(f"s_and_b32 s6, s{S_WAVE}, 1\ns_lshl_b32 s6, s6, 5\nv_add_u32 v7, s6, v5\nv_mul_u32_u24 v7, 3456, v7")
    p.e("v_and_b32 v8, 2, v5\nv_xor_b32 v8, v6, v8\nv_xor_b32 v9, 4, v8\nv_lshl_add_u32 v8, v8, 4, v7\nv_lshl_add_u32 v9, v9, 4, v7")
    for i in range(4): p.e(f"v_add_u32 v{V_WGD+i}, {i*(8*3456-1024)}, v{8+(i&1)}")
    if OPT['rot']:
        p.e(f"s_mul_i32 s6, s{S_HL}, 5\ns_add_u32 s6, s6, 1\ns_lshr_b32 s6, s6, 1\ns_add_u32 s6, s6, s{S_QB}\ns_add_u32 s6, s6, s3")
        for z in range(2): p.e("s_sub_u32 s7, s6, 10\ns_cmp_ge_u32 s6, 10\ns_cselect_b32 s6, s7, s6")
        p.e(f"s_mov_b32 s{S_KX}, s6\ns_mov_b32 s{S_KW}, s6")
    else: p.e(f"s_mov_b32 s{S_KX}, 0\ns_mov_b32 s{S_KW}, 0")
    p.e(f"s_lshl_b32 s{S_MX}, s{S_WAVE}, 13\ns_lshl_b32 s{S_MW}, s{S_WAVE}, 12")
    p.e("s_waitcnt lgkmcnt(0)")
    p.e(f"s_mul_i32 s6, s{S_QB}, {256*1280}")
    srd_off(p, S_X, 92, "s6", 256*1280)
    p.e(f"s_lshl_b32 s7, s{S_HEAD}, 2\ns_add_u32 s7, s7, s{S_WAVE}\ns_lshl_b32 s7, s7, 1")
    p.e(f"v_lshrrev_b32 v48, 5, v{V_LANE}\nv_add_u32 v48, s7, v48\nv_mul_u32_u24 v49, 1280, v48\nv_and_b32 v50, 31, v{V_LANE}\nv_lshl_add_u32 v49, v50, 3, v49")
    for i in range(5): p.e(f"buffer_load_dwordx2 v[{10+2*i}:{11+2*i}], v49, {sr(S_X)}, 0 offen offset:{256*i}")
    p.e(f"s_lshl_b32 s6, s{S_HEAD}, 8")
    srd_off(p, S_WQ, 60, "s6", 0)
    p.e(f"s_sub_u32 s{S_WQ+2}, {640*8192}, s6")
    p.e(f"s_cmp_lt_u32 s{S_WAVE}, 2\ns_cselect_b32 s52, s64, s66\ns_cselect_b32 s53, s65, s67")
    p.e(f"s_lshl_b32 s6, s{S_SIG}, 7")
    srd_off(p, S_WG, 52, "s6", 0)
    p.e(f"s_sub_u32 s7, {640*3456}, s6\ns_cmp_lt_u32 s{S_SIG}, 27\ns_cselect_b32 s{S_WG+2}, s7, 0")

def setup2(p):
    p.e(f"s_lshl_b32 s6, s{S_HEAD}, 19")
    srd_off(p, S_V, 26, "s6", 524288)
    srd_off(p, S_K, 24, "s6", 524288)
    p.e(f"s_lshl_b32 s6, s{S_QB}, 2\ns_add_u32 s6, s6, s{S_WAVE}\ns_mul_i32 s6, s6, {AF_RT}\ns_add_u32 s6, s6, {WS_AF}")
    srd_off(p, S_AF, 68, "s6", NSTEP*4096)
    srd_off(p, S_FL, 68, WS_FL, 4096)
    p.e(f"s_mov_b32 s{S_KOFF}, 0\ns_mov_b32 s{S_VOFF}, 0")
    p.e("v_lshl_add_u32 v7, v1, 3, v2\nv_lshlrev_b32 v8, 8, v7\nv_lshl_add_u32 v8, v3, 4, v8\nv_add_u32 v8, 0x10000, v8")
    p.e(f"v_xor_b32 v51, s{S_WAVE}, v2")
    for c in range(4): p.e(f"v_xor_b32 v9, {c}, v51\nv_lshl_add_u32 v{V_WQA+c}, v9, 6, v8\nv_add_u32 v{V_WQA2+c}, 0x10000, v{V_WQA+c}")
    p.e("v_lshlrev_b32 v8, 7, v7\nv_lshl_add_u32 v8, v3, 3, v8\nv_add_u32 v8, 0x14000, v8")
    p.e(f"v_lshrrev_b32 v9, 1, v2\nv_xor_b32 v51, s{S_WAVE}, v1\nv_and_b32 v51, 1, v51\nv_lshl_add_u32 v51, v51, 1, v9")
    p.e(f"s_lshr_b32 s6, s{S_WAVE}, 1\ns_lshl_b32 s6, s6, 13\nv_add_u32 v8, s6, v8")
    for t in range(4):
        p.e(f"v_xor_b32 v9, {t}, v51\nv_lshl_add_u32 v{V_WGA+t}, v9, 5, v8\nv_xor_b32 v{V_WGA+4+t}, 0x2000, v{V_WGA+t}")
        p.e(f"v_add_u32 v{V_WGA2+t}, 0x10000, v{V_WGA+t}\nv_add_u32 v{V_WGA2+4+t}, 0x10000, v{V_WGA+4+t}")
    p.e(f"s_lshl_b32 s6, s{S_WAVE}, 6\nv_add_u32 v8, s6, v4\nv_lshlrev_b32 v8, 7, v8\nv_lshrrev_b32 v9, 1, v4\nv_xor_b32 v9, v9, v1")
    p.e(f"v_lshl_add_u32 v{V_XA}, v9, 4, v8\nv_xor_b32 v9, 4, v9\nv_lshl_add_u32 v{V_XA+1}, v9, 4, v8")
    p.e(f"v_lshl_add_u32 v8, v2, 4, v3\nv_lshlrev_b32 v8, 8, v8\nv_xor_b32 v9, v1, v4\ns_lshl_b32 s6, s{S_WAVE}, 2\nv_xor_b32 v9, s6, v9")
    for c in range(4): p.e(f"v_xor_b32 v51, {4*c}, v9\nv_lshl_add_u32 v{V_KA+c}, v51, 4, v8")
    p.e("v_lshl_add_u32 v8, v1, 4, v2\nv_lshlrev_b32 v8, 8, v8\nv_lshl_add_u32 v8, v3, 3, v8\nv_add_u32 v8, 0x10000, v8")
    p.e("v_and_b32 v9, 1, v1\nv_lshl_add_u32 v9, v9, 2, v2")
    for d in range(8): p.e(f"v_xor_b32 v51, {d}, v9\nv_lshl_add_u32 v{V_VA+d}, v51, 5, v8")
    p.e(f"s_lshl_b32 s6, s{S_WAVE}, 4\nv_add_u32 v8, s6, v1\nv_lshlrev_b32 v8, 8, v8")
    p.e(f"s_lshl_b32 s6, s{S_WAVE}, 2\nv_add_u32 v9, s6, v1\nv_xor_b32 v9, v9, v4\nv_lshl_add_u32 v{V_KD}, v9, 4, v8")
    p.e(f"s_and_b32 s6, s{S_WAVE}, 1\ns_lshl_b32 s6, s6, 2\nv_add_u32 v9, s6, v1\nv_lshlrev_b32 v9, 1, v9\nv_xor_b32 v9, v9, v4\nv_lshl_add_u32 v{V_VD}, v9, 4, v8")
    p.e(f"v_lshlrev_b32 v{V_C16}, 4, v{V_LANE}\nv_add_u32 v{V_C16B}, 4096, v{V_C16}")
    p.e("s_cmp_lt_u32 s2, 128\ns_cselect_b32 s86, s86, s88\ns_cselect_b32 s87, s87, s89\ns_and_b32 s6, s2, 127\ns_mul_i32 s6, s6, 40960")
    srd_off(p, S_RS, 86, "s6", 40960)
    srd_off(p, S_RD, 68, WS_WF, 8*WF_CT)
    p.e(f"s_cmp_lt_u32 s2, {NSTEP}\ns_cselect_b32 s{S_RS+2}, s{S_RS+2}, 0\ns_cselect_b32 s{S_RD+2}, s{S_RD+2}, 0")
    p.e(f"s_mul_i32 s{S_RO0}, s{S_WAVE}, {2*WF_CT}\ns_mul_i32 s6, s2, 5120\ns_add_u32 s{S_RO0}, s{S_RO0}, s6\ns_add_u32 s{S_RO1}, s{S_RO0}, {WF_CT}")
    p.e(f"s_add_u32 s6, s{S_MX}, {LDS_RL}\nv_lshrrev_b32 v8, 2, v{V_LANE}\nv_mul_u32_u24 v8, 160, v8\nv_mul_u32_u24 v9, 40, v3\nv_add3_u32 v{V_RLA}, v8, v9, s6\nv_add_u32 v{V_RLW}, s6, v{V_C16}")
    p.e(f"s_lshl_b32 s6, s{S_QB}, 11\ns_add_u32 s6, s6, {WS_ST}")
    srd_off(p, S_STT, 68, "s6", 2048)
    for r in range(4): p.e(f"v_mov_b32 v{V_ONES+r}, 0x3f803f80")
    srd(p, S_DBG, "s62", "s63", 256)
    if OPT['fine']: p.e(f"s_mov_b32 s{S_FI}, 0\nv_mov_b32 v{V_FS}, 0")

def adv_mod(r,n): return [f"s_add_u32 s{r}, s{r}, 1", f"s_cmp_eq_u32 s{r}, {n}", f"s_cselect_b32 s{r}, 0, s{r}"]
def wslot(c): return (c+1)%3
def x_dma(c):
    G=[]
    for h in range(2):
        for i in range(4):
            g=[]
            if i==0: g.append(f"s_add_u32 m0, s{S_MX}, {(c&1)*32768+h*4096}")
            if i==0 and h==0: g.append(f"s_lshl_b32 s{S_XOFF}, s{S_KX}, 7")
            g.append(f"buffer_load_dwordx4 v{V_XD+h*4+i}, {sr(S_X)}, s{S_XOFF} offen offset:{i*1024} lds @x{c}")
            if i==1 and h==0: g+=adv_mod(S_KX,10)
            G.append(g)
    return G
def w_dma(c):
    G=[]
    o=65536+wslot(c)*32768
    for base,lo,srd_,so,st in ((V_WQD,0,S_WQ,S_WQOFF,64*8192),(V_WGD,16384,S_WG,S_WGOFF,64*3456)):
        for i in range(4):
            g=[]
            if i==0: g+= [f"s_add_u32 m0, s{S_MW}, {o+lo}", f"s_mul_i32 s{so}, s{S_KW}, {st}"]
            g.append(f"buffer_load_dwordx4 v{base+i}, {sr(srd_)}, s{so} offen offset:{i*1024} lds @w{c}")
            if i==1 and lo: g+=adv_mod(S_KW,10)
            G.append(g)
    return G
def kv_dma(kind, j):
    G=[]
    lo,vd,srd_,so = (0,V_KD,S_K,S_KOFF) if kind=='K' else (65536,V_VD,S_V,S_VOFF)
    for i in range(4):
        g=[]
        if i==0: g.append(f"s_add_u32 m0, s{S_MW}, {lo+(j&3)*16384}")
        g.append(f"buffer_load_dwordx4 v{vd}, {sr(srd_)}, s{so} offen offset:{i*1024} lds @{kind}{j}")
        if i==3: g.append(f"s_add_u32 s{so}, s{so}, 16384")
        G.append(g)
    return G
def flat(p,G):
    for g in G:
        for t in g: p.e(t)

def pro_areads(T, c):
    b=192+(T%4)*8; ws=wslot(c); o=(ws&1)*32768 if ws<2 else 0
    R=[]
    for s in range(2):
        for hf in range(2):
            d=b+s*4+hf*2
            if T<8:
                R.append(f"ds_read_b64_tr_b16 a[{d}:{d+1}], v{(V_WQA if ws<2 else V_WQA2)+(T>>1)} offset:{o+s*8192+hf*1024+(T&1)*8}")
            else:
                R.append(f"ds_read_b64_tr_b16 a[{d}:{d+1}], v{(V_WGA if ws<2 else V_WGA2)+(T-8)} offset:{o+s*4096+hf*512}")
    return R
def pro_breads(c):
    st=c&1
    return [f"ds_read_b128 {r4('a',128+st*32+(qt*2+s)*4)}, v{V_XA+s} offset:{st*32768+qt*2048}" for qt in range(4) for s in range(2)]


V_Z=252
def arrive(label, word_off_expr):
    o=[I(f"s_cmp_lg_u32 s{S_WAVE}, 0"), I(f"s_cbranch_scc1 {label}")]
    for t in [f"s_lshl_b32 s{S_T0}, s{S_QB}, 5", f"v_mov_b32 v{V_Z+1}, 1", "s_mov_b64 exec, 1",
              f"buffer_atomic_add v{V_Z+1}, v{V_Z}, {sr(S_DBG)}, s{S_T0} offen offset:{word_off_expr} sc1", "s_mov_b64 exec, -1"]:
        o.append(I(t,'slow'))
    o.append(I(f"{label}:"))
    return o

def pro_chunk(c):
    st=c&1
    mf=[]; tg=[]
    for T in range(16):
        tg.append(len(mf))
        for qt in range(4):
            for s in range(2):
                acc = r4('v',(T*4+qt)*4) if T<8 else r4('a',((T-8)*4+qt)*4)
                cc = "0" if (c==0 and s==0) else acc
                mf.append(f"{MF} {acc}, {r4('a',192+(T%4)*8+s*4)}, {r4('a',128+st*32+(qt*2+s)*4)}, {cc}")
        if T in (0,1,8,9):
            acc=r4('v',V_CS+((T>>3)*2+(T&1))*4)
            for s in range(2):
                mf.append(f"{MF} {acc}, {r4('a',192+(T%4)*8+s*4)}, {r4('v',V_ONES)}, {'0' if (c==0 and s==0) else acc}")
    G=Gaps(mf)
    for T in range(14):
        for k,t in enumerate(pro_areads(T+2, c)): G.put(tg[T]+2*k, t)
    D=[]; gap=OPT['dmagap']
    if c==1: D+=x_dma(2); gap=4
    if 1<=c<=7: D+=w_dma(c+2)+x_dma(c+2)
    if c==4:
        gap=4
        for pr in range(2):
            for i in range(5):
                D.append([f"buffer_load_dwordx4 {r4('v',V_RL+pr*20+i*4)}, v{V_RL+20+i*4}, {sr(S_RS)}, 0 offen offset:{pr*160}"])
    if c==8:
        D.append([f"s_lshl_b32 s{S_T1}, s{S_QB}, 5", f"s_add_u32 s{S_T1}, s{S_T1}, 16", f"buffer_load_dword v{V_POLL}, v{V_Z}, {sr(S_DBG)}, s{S_T1} offen sc1"])
        g=5
        for pr in range(2):
            for i in range(5): G.put(g, f"ds_write_b128 v{V_RLW}, {r4('v',V_RL+pr*20+i*4)} offset:{i*1024}"); g+=2
            for nt in range(5):
                d=V_RL+pr*20+nt*4
                G.put(g, f"ds_read_b64_tr_b16 v[{d}:{d+1}], v{V_RLA} offset:{nt*8}"); g+=2
                G.put(g, f"ds_read_b64_tr_b16 v[{d+2}:{d+3}], v{V_RLA} offset:{nt*8+16*160}"); g+=2
        g+=4
        for pr in range(2):
            for nt in range(5):
                va,o=(V_C16,nt*1024) if nt<4 else (V_C16B,0)
                G.put(g, f"buffer_store_dwordx4 {r4('v',V_RL+pr*20+nt*4)}, v{va}, {sr(S_RD)}, s{S_RO0+pr} offen offset:{o} sc1"); g+=4
        assert g<tg[14], g
    if c==9:
        gap=6
        D=kv_dma('K',0)
        for qt in range(4): D.append([f"buffer_load_dwordx2 v[{V_ST+2*qt}:{V_ST+2*qt+1}], v{V_PADDR}, {sr(S_STT)}, 0 offen offset:{qt*128} sc1"])
        D+=kv_dma('K',1)+kv_dma('V',0)+kv_dma('V',1)
    for k,g in enumerate(D): G.group((1+gap*k)|1, g)
    if c==3 and OPT['pf']:
        for t in [f"s_lshl_b32 s{S_T0}, s{S_QB}, 1", f"s_lshr_b32 s{S_T1}, s{S_WAVE}, 1", f"s_add_u32 s{S_T0}, s{S_T0}, s{S_T1}", f"s_lshl_b32 s{S_T0}, s{S_T0}, 12",
                  f"s_and_b32 s{S_T1}, s{S_WAVE}, 1", f"s_lshl_b32 s{S_T1}, s{S_T1}, 31", f"s_or_b32 s{S_T2}, s{S_T0}, s{S_T1}", f"s_xor_b32 s{S_T0}, s{S_T2}, 0x80000000"]: G.put(110,t)
        G.put(113, f"buffer_load_dword v{V_PF}, v{V_PADDR}, {sr(S_K)}, s{S_T2} offen @pf")
        G.put(115, f"buffer_load_dword v{V_PF}, v{V_PADDR}, {sr(S_V)}, s{S_T0} offen @pf")
    out=None
    if c<9:
        g0=tg[14]
        w = "s_waitcnt vmcnt(0) lgkmcnt(0)" if c==0 else f"WAITTOK lgkmcnt(0) @x{c+1},w{c+1}"
        for t in fine_pre()+[w,"s_barrier"]+fine_post(): G.put(g0,t)
        R=pro_breads(c+1); A0=pro_areads(0,c+1); A1=pro_areads(1,c+1)
        for k,t in enumerate([R[0],R[1]]+A0+R[2:]+A1): G.put(g0+k,t)
    out=G.emit()
    if c==0: out+=arrive("K1_arrS",16)
    if c==8:
        out+=spin("K1_spinS",S_DBG,f"s{S_T1}",32,V_Z)
        out+=[f"v_and_b32 v{V_PADDR}, 15, v{V_LANE}", f"s_lshl_b32 s{S_T0}, s{S_WAVE}, 6", f"v_add_u32 v{V_PADDR}, s{S_T0}, v{V_PADDR}", f"v_lshlrev_b32 v{V_PADDR}, 3, v{V_PADDR}"]
    return out

def ln_stats(p):
    for i in range(10): p.e(f"v_lshlrev_b32 v{20+2*i}, 16, v{10+i}\nv_and_b32 v{21+2*i}, 0xffff0000, v{10+i}")
    def red32(r, t):
        for m in ("quad_perm:[1,0,3,2]","quad_perm:[2,3,0,1]","row_half_mirror","row_mirror"):
            p.e(f"v_add_f32_dpp v{r}, v{r}, v{r} {m} row_mask:0xf bank_mask:0xf")
        p.e(f"v_mov_b32 v{t}, v{r}\nv_permlane16_swap_b32 v{r}, v{t}\nv_add_f32 v{r}, v{r}, v{t}")
    p.e("v_pk_add_f32 v[40:41], v[20:21], v[22:23]")
    for i in range(24,40,2): p.e(f"v_pk_add_f32 v[40:41], v[40:41], v[{i}:{i+1}]")
    p.e("v_add_f32 v40, v40, v41")
    red32(40, 41)
    p.e(f"v_mul_f32 v40, 0x{f2u(-1.0/640):08x}, v40")
    for i in range(20,40,2): p.e(f"v_pk_add_f32 v[{i}:{i+1}], v[{i}:{i+1}], v[40:41] op_sel_hi:[1,0]")
    p.e("v_pk_mul_f32 v[42:43], v[20:21], v[20:21]")
    for i in range(22,40,2): p.e(f"v_pk_fma_f32 v[42:43], v[{i}:{i+1}], v[{i}:{i+1}], v[42:43]")
    p.e("v_add_f32 v41, v42, v43")
    red32(41, 42)
    p.e(f"v_mul_f32 v41, 0x{f2u(1.0/640):08x}, v41")
    bf16_round(p,40,40); bf16_round(p,41,41)
    p.e(f"v_add_f32 v41, 0x{f2u(1e-5):08x}, v41"); bf16_round(p,41,41)
    p.e("v_sqrt_f32 v41, v41"); bf16_round(p,41,41)
    p.e("v_rcp_f32 v41, v41")
    p.e("v_lshlrev_b32 v48, 3, v48\ns_mov_b32 exec_lo, 1\ns_mov_b32 exec_hi, 1")
    p.e(f"buffer_store_dwordx2 v[40:41], v48, {sr(S_STT)}, 0 offen sc1\ns_mov_b64 exec, -1")

def prologue(p):
    flat(p, x_dma(0)+w_dma(0)+x_dma(1)+w_dma(1)+w_dma(2))
    if OPT['pf']:
        p.e(f"s_mul_i32 s6, s{S_QB}, 56\ns_add_u32 s6, s6, 192\ns_mul_i32 s7, s6, 3456")
        p.e(f"s_lshr_b32 s{S_T0}, s{S_WAVE}, 1\ns_mul_i32 s{S_T0}, s{S_T0}, 28\ns_add_u32 s6, s6, s{S_T0}\ns_lshl_b32 s6, s6, 13")
        p.e(f"s_and_b32 s{S_T0}, s{S_WAVE}, 1\ns_lshl_b32 s{S_T0}, s{S_T0}, 31\ns_or_b32 s7, s7, s{S_T0}\ns_xor_b32 s{S_T0}, s{S_T0}, 0x80000000\ns_or_b32 s6, s6, s{S_T0}")
        p.e(f"v_min_u32 v52, 55, v{V_LANE}\nv_mul_u32_u24 v53, 3456, v52")
        p.e(f"v_lshrrev_b32 v54, 1, v52\nv_lshlrev_b32 v54, 13, v54\nv_and_b32 v52, 1, v52\nv_lshl_add_u32 v54, v52, 7, v54")
        p.e(f"buffer_load_dword v{V_PF}, v53, {sr(S_WG)}, s7 offen @pf")
        p.e(f"buffer_load_dword v{V_PF}, v54, {sr(S_WQ)}, s6 offen @pf")
        p.e(f"v_and_b32 v{V_PADDR}, 31, v{V_LANE}\nv_lshlrev_b32 v{V_PADDR}, 7, v{V_PADDR}")
    if OPT['codepf']:
        p.e(f"s_getpc_b64 s[6:7]\ns_lshr_b32 s{S_T0}, s2, 3\ns_lshl_b32 s{S_T0}, s{S_T0}, 11")
        p.e(f"v_and_b32 v52, 15, v0\nv_lshlrev_b32 v52, 7, v52\nv_add_u32 v52, s{S_T0}, v52")
        p.e(f"global_load_dword v{V_PF}, v52, s[6:7] @pf")
    setup2(p)
    for i in range(5):
        d=V_RL+20+i*4
        p.e(f"v_add_u32 v52, {64*i}, v{V_LANE}\nv_mul_u32_u24 v53, 6554, v52\nv_lshrrev_b32 v53, 16, v53\nv_mul_u32_u24 v54, 10, v53\nv_sub_u32 v52, v52, v54")
        p.e(f"v_mul_u32_u24 v53, 1280, v53\nv_lshl_add_u32 v53, v52, 4, v53\ns_mul_i32 s{S_T0}, s{S_WAVE}, 320\nv_add_u32 v{d}, s{S_T0}, v53")
    p.e(f"v_mov_b32 v{V_Z}, 0")
    ln_stats(p)
    p.e("WAITTOK @x0,w0\ns_barrier")
    stamp(p,1)
    for t in pro_breads(0)+pro_areads(0,0)+pro_areads(1,0): p.e(t)
    for c in range(10): p.ext(pro_chunk(c))

def pro_epilogue(p):
    p.e(f"v_lshrrev_b32 v{V_CSA}, 4, v{V_LANE}\nv_lshlrev_b32 v{V_CSA}, 4, v{V_CSA}\ns_lshl_b32 s{S_T0}, s{S_WAVE}, 7\ns_add_u32 s{S_T0}, s{S_T0}, {LDS_CS}\nv_add_u32 v{V_CSA}, s{S_T0}, v{V_CSA}")
    for c in range(1,4): p.e(f"v_xor_b32 v{V_CSA+c}, {c*128}, v{V_CSA}")
    p.e("s_mov_b32 exec_lo, 0x00010001\ns_mov_b32 exec_hi, 0x00010001")
    for k in range(4): p.e(f"ds_write_b128 v{V_CSA}, {r4('v',V_CS+k*4)} offset:{(k&1)*64+(k>>1)*512}")
    p.e("s_mov_b64 exec, -1")
    p.e("s_waitcnt lgkmcnt(0)\ns_barrier")
    def csreg(T): return V_CS+T*4 if T<4 else (T-4)*4
    def csread(T): p.e(f"ds_read_b128 {r4('v',csreg(T))}, v{V_CSA+((T&7)>>1)} offset:{(T&1)*64+(T>>3)*512}")
    for T in range(4): csread(T)
    flat(p, kv_dma('K',2))
    sc = math.log2(math.e)/math.sqrt(128.0)
    for qt in range(4): p.e(f"v_mul_f32 v{244+qt}, 0x{f2u(sc):08x}, v{V_ST+2*qt+1}\nv_mul_f32 v{248+qt}, v{V_ST+2*qt+1}, v{V_ST+2*qt+1}")
    def bc(r):
        return f"v[{r&~1}:{(r&~1)+1}]", r&1
    def pkfma(d, a, breg, c):
        pr,o=bc(breg); return f"v_pk_fma_f32 v[{d}:{d+1}], v[{a}:{a+1}], {pr}, v[{c}:{c+1}] op_sel:[0,{o},0] op_sel_hi:[1,{o},1]"
    def pkmul(d, a, breg):
        pr,o=bc(breg); return f"v_pk_mul_f32 v[{d}:{d+1}], v[{a}:{a+1}], {pr} op_sel:[0,{o}] op_sel_hi:[1,{o}]"
    for T in range(8):
        for qt in range(4):
            b=(T*4+qt)*4
            for z in (0,2): p.e(pkfma(b+z, csreg(T)+z, V_ST+2*qt, b+z))
            for z in (0,2): p.e(pkmul(b+z, b+z, 244+qt))
            d=V_Q+(qt*4+(T>>1))*4+(T&1)*2
            p.e(f"v_cvt_pk_bf16_f32 v{d}, v{b}, v{b+1}\nv_cvt_pk_bf16_f32 v{d+1}, v{b+2}, v{b+3}")
        if T<3:
            for TT in range(4+4*T,8+4*T): csread(TT)
    p.e(f"s_waitcnt lgkmcnt(0)\ns_cmp_lt_u32 s{S_WAVE}, 2\ns_cbranch_scc0 K1_hB")
    for var in range(2):
        if var==1: p.e("s_branch K1_hdone\nK1_hB:")
        for t in range(4):
            for qt in range(4):
                g=(t*4+qt)*4; tb=48+((t*4+qt)&1)*8
                for r in range(4): p.e(f"v_accvgpr_read_b32 v{tb+r}, a{g+r}\nv_accvgpr_read_b32 v{tb+4+r}, a{64+g+r}")
                for z in (0,2): p.e(pkfma(tb+z, csreg(8+t)+z, V_ST+2*qt, tb+z)); p.e(pkfma(tb+4+z, csreg(12+t)+z, V_ST+2*qt, tb+4+z))
                gb, ub = (tb,tb+4) if var==0 else (tb+4,tb)
                for r in range(4): p.e(f"v_max_f32 v{gb+r}, 0, v{gb+r}")
                for z in (0,2): p.e(pkmul(ub+z, ub+z, 248+qt))
                for z in (0,2): p.e(f"v_pk_mul_f32 v[{tb+z}:{tb+z+1}], v[{tb+z}:{tb+z+1}], v[{tb+4+z}:{tb+5+z}]")
                d=64+((t>>1)*4+qt)*4+(t&1)*2
                p.e(f"v_cvt_pk_bf16_f32 v{d}, v{tb}, v{tb+1}\nv_cvt_pk_bf16_f32 v{d+1}, v{tb+2}, v{tb+3}")
    p.e("K1_hdone:")
    p.e(f"s_lshl_b32 s{S_T0}, s{S_SIG}, 1\ns_and_b32 s{S_T1}, s{S_WAVE}, 1\ns_add_u32 s{S_T0}, s{S_T0}, s{S_T1}\ns_add_u32 s{S_T0}, s{S_T0}, 128\ns_lshl_b32 s{S_T0}, s{S_T0}, 12\ns_xor_b32 s{S_T1}, s{S_T0}, 4096")
    for c2 in range(2):
        for qt in range(4):
            p.e(f"buffer_store_dwordx4 {r4('v',64+(c2*4+qt)*4)}, v{V_C16}, {sr(S_AF)}, s{S_T0+c2} offen offset:{qt*1024} sc1")
    p.e(f"s_lshl_b32 s{S_T0}, s{S_QB}, 2\ns_add_u32 s{S_T0}, s{S_T0}, s{S_WAVE}\ns_lshl_b32 s{S_T0}, s{S_T0}, 5\ns_add_u32 s{S_T0}, s{S_T0}, s{S_HEAD}\ns_lshl_b32 s{S_FOFF}, s{S_T0}, 2")
    p.e(f"s_mov_b64 exec, 1\nbuffer_store_dword v{V_Z}, v{V_Z}, {sr(S_FL)}, s{S_FOFF} offen sc1\ns_mov_b64 exec, -1")
    for r in range(64,128): p.e(f"v_accvgpr_write_b32 a{r}, 0")
    for r in range(4): p.e(f"v_mov_b32 v{V_L+r}, 0")

def kreads(j, kts):
    return [f"ds_read_b128 {r4('a',A_K+(kt*4+c)*4)}, v{V_KA+c} offset:{(j&3)*16384+kt*1024}" for kt in kts for c in range(4)]
def vreads(j, dts):
    R=[]
    for dt in dts:
        for u in range(2):
            for hf in range(2):
                d=A_V+(dt*2+u)*4+hf*2
                R.append(f"ds_read_b64_tr_b16 a[{d}:{d+1}], v{V_VA+dt} offset:{(j&3)*16384+u*2048+hf*1024}")
    return R
def qk(u, zero=False):
    M=[]
    for kt in (2*u,2*u+1):
        for qt in range(4):
            d=r4('v',V_S+(kt*4+qt)*4)
            for c in range(4):
                cc = d if c else ("0" if zero else r4('v',V_NM+qt*4))
                M.append(f"{MF} {d}, {r4('a',A_K+(kt*4+c)*4)}, {r4('v',V_Q+(qt*4+c)*4)}, {cc}")
    return M
def pv(j, dts, zero=False):
    M=[]
    for dt in dts:
        for qt in range(4):
            d=r4('a',(dt*4+qt)*4)
            for u in range(2):
                M.append(f"{MF} {d}, {r4('a',A_V+(dt*2+u)*4)}, {r4('v',V_P+(j&1)*32+(u*4+qt)*4)}, {'0' if zero and u==0 else d}")
    return M
def softmax(j, kt):
    X=[];A=[];C=[]
    u=kt>>1
    for qt in range(4):
        b=V_S+(kt*4+qt)*4
        for r in range(4):
            X.append(f"v_exp_f32 v{b+r}, v{b+r}")
            A.append(f"v_add_f32 v{V_L+qt}, v{V_L+qt}, v{b+r}")
        d=V_P+(j&1)*32+(u*4+qt)*4+(kt&1)*2
        C.append(f"v_cvt_pk_bf16_f32 v{d}, v{b}, v{b+1}"); C.append(f"v_cvt_pk_bf16_f32 v{d+1}, v{b+2}, v{b+3}")
    return X,A,C

def segment(mf, sm, lds, dma, pre=(), early_lds=False):
    if mf is None and sm:
        X,A,C=sm
        out=[t.replace('S_','s_',1) if t.startswith('S_') else t for t in pre]+list(lds)
        for g in dma: out+=g
        return out+X+A+C
    G=Gaps(mf)
    for t in pre: G.put(0,t)
    if sm:
        X,A,C=sm
        for k in range(16):
            G.put(2*k,X[k]); G.put(2*k+1,A[k])
            if k&1: G.put(2*k+1,C[k>>1])
        base=[4*k+1 for k in range(8)]
        over=[3,11,19,27,7,23,15,31]
        if early_lds: base=base[:7]; over=[3,11,19,15,7,23]
        slots=sorted(base+over[:max(0,len(lds)-len(base))])[:len(lds)] if len(lds)>len(base) else base[:len(lds)]
        dg=[7,23,15,31,3,11,19,27]
        if early_lds: dg=[27,29,31,23]
        dg=sorted(dg[:len(dma)])
    else:
        slots=[2*k for k in range(16)][:len(lds)]
        dg=[2*k+1 for k in range(16)][:len(dma)]
    assert len(slots)==len(lds) and len(dg)==len(dma)
    for g,t in zip(slots,lds): G.put(g,t)
    for g,grp in zip(dg,dma): G.group(g,grp)
    return G.emit()

NT=32
def period(j, X=None):
    X=X or {}
    out=[]
    hasK = j<NT; hasV = 0<=j-1<NT
    D = (kv_dma('K',j+3) if j+3<NT+1 else [])+(kv_dma('V',j+2) if j+2<NT else [])
    D = [D[0:2],D[2:4],D[4:6],D[6:8]]
    if j==0: D=[[],[],[],[]]
    if j==1:
        Z=kv_dma('K',3)+kv_dma('V',2)+kv_dma('K',4)+kv_dma('V',3); D=[Z[0:4],Z[4:8],Z[8:12],Z[12:16]]
    for k,sg in enumerate("ABCD"): D[k]=D[k]+X.get(sg,[])
    KR0=kreads(j,(0,1)) if hasK else []; KR1=kreads(j,(2,3)) if hasK else []
    V=vreads(j-1,range(8)) if hasV else []
    pre=fine_pre()+[f"WAITTOK lgkmcnt(0) @K{j},V{j-1}" if j!=1 else "s_waitcnt vmcnt(0) lgkmcnt(0)","s_barrier"]+fine_post() if (j>=1 and (hasK or hasV)) else []
    if j>=1:
        out+=segment(pv(j-2,range(4,8)) if j-2>=0 else None, softmax(j-1,2) if j-1<NT else None, KR0+V[0:4], D[0], pre)
        out+=X.get('mid',[])
        if j-1<NT:
            out+=segment(qk(0) if hasK else None, softmax(j-1,3), KR1+V[4:8]+([] if hasK else V[8:16]), D[1])
    if j<NT:
        out+=segment(qk(1), softmax(j,0), V[8:20], D[2])
        out+=segment(pv(j-1,range(4),zero=(j==1)) if j>=1 else None, softmax(j,1), V[20:32], D[3], early_lds=OPT['earlylds'])
    elif j==NT:
        out+=segment(pv(j-1,range(4)), None, V[16:32], D[3])
    return out

def att_start(p):
    p.e("WAITTOK @K0\ns_barrier")
    for t in kreads(0,(0,1,2,3)): p.e(t)
    for t in qk(0,zero=True): p.e(t)
    for qt in range(4):
        a=V_S+qt*4; b=V_S+(4+qt)*4; m=V_NM+qt*4
        p.e(f"v_max3_f32 v{m}, v{a}, v{a+1}, v{a+2}\nv_max3_f32 v{m+1}, v{a+3}, v{b}, v{b+1}\nv_max3_f32 v{m}, v{m}, v{b+2}, v{b+3}\nv_max_f32 v{m}, v{m}, v{m+1}")
        p.e(f"v_mov_b32 v{m+1}, v{m}\nv_permlane16_swap_b32 v{m}, v{m+1}\nv_max_f32 v{m}, v{m}, v{m+1}")
        p.e(f"v_mov_b32 v{m+1}, v{m}\nv_permlane32_swap_b32 v{m}, v{m+1}\nv_max_f32 v{m}, v{m}, v{m+1}")
        p.e(f"v_sub_f32 v{m}, 0, v{m}\nv_mov_b32 v{m+1}, v{m}\nv_mov_b32 v{m+2}, v{m}\nv_mov_b32 v{m+3}, v{m}")
        for r in range(4): p.e(f"v_add_f32 v{a+r}, v{a+r}, v{m}\nv_add_f32 v{b+r}, v{b+r}, v{m}")

S_CA, S_CW, S_XI, S_OUT = 8, 12, 16, 24
S_AO=40; S_WO=41; S_AD=42; S_WD=43; S_LA=45; S_LW=55; S_SPIN=54
def spin(label, srd_, soff, expect, va=V_PADDR):
    o=[(f"s_mov_b32 s{S_SPIN}, 0x100000",None),(f"v_mov_b32 v{V_POLL}, v{V_POLL}",None),(f"{label}:",None),
       (f"v_cmp_ne_u32 vcc, {expect}, v{V_POLL}",None),(f"s_cbranch_vccz {label}_ok",None),
       ("s_sleep 2",'slow'),(f"buffer_load_dword v{V_POLL}, v{va}, {sr(srd_)}, {soff} offen sc1",'slow'),
       (f"s_sub_u32 s{S_SPIN}, s{S_SPIN}, 1",'slow'),(f"s_cmp_lg_u32 s{S_SPIN}, 0",'slow'),("s_waitcnt vmcnt(0)",'slow'),(f"s_cbranch_scc1 {label}",'slow'),
       (f"{label}_ok:",None)]
    return [I(t,g) for t,g in o]

def c_setup(p):
    p.e(f"s_mul_i32 s{S_T0}, s{S_RT}, {AF_RT}\ns_add_u32 s{S_T0}, s{S_T0}, {WS_AF}")
    srd_off(p, S_CA, 68, f"s{S_T0}", NSTEP*4096)
    p.e(f"s_mul_i32 s{S_T0}, s{S_CT}, {WF_CT}\ns_add_u32 s{S_T0}, s{S_T0}, {WS_WF}")
    srd_off(p, S_CW, 68, f"s{S_T0}", NSTEP*5120)
    srd(p, S_XI, "s92", "s93", 2048*1280)
    p.e(f"s_lshl_b32 s{S_AO}, s{S_WAVE}, 17\ns_mul_i32 s{S_WO}, s{S_WAVE}, {32*5120}")
    p.e(f"s_mul_i32 s{S_T0}, s{S_WAVE}, 14\ns_add_u32 s{S_T0}, s{S_T0}, 128\ns_lshl_b32 s{S_AD}, s{S_T0}, 12\ns_mul_i32 s{S_WD}, s{S_T0}, 5120")
    p.e(f"v_and_b32 v{V_PADDR}, 7, v{V_LANE}\nv_lshlrev_b32 v{V_PADDR}, 5, v{V_PADDR}")
    if OPT['rotC']:
        p.e(f"s_lshl_b32 s{S_RO}, s{S_CT}, 1\ns_add_u32 s{S_RO}, s{S_RO}, s{S_RT}\ns_and_b32 s{S_RO}, s{S_RO}, 7\ns_mul_i32 s{S_RA}, s{S_RO}, 7\ns_lshr_b32 s{S_RA}, s{S_RA}, 2")
    else: p.e(f"s_mov_b32 s{S_RO}, 0\ns_mov_b32 s{S_RA}, 0")

PRE_STRIPES={('A',0):16384, ('W',0):65536, ('A',1):131072, ('W',1):131072+16384, ('A',2):32768, ('W',2):65536+16384}
class CState:
    def __init__(self):
        self.free=[]; self.A={}; self.W={}
    def off(self,t,dst,bd,bo,stride):
        if t<14:
            return [f"s_add_u32 s{dst}, s{S_RA}, {t}", f"s_sub_u32 s{S_T2}, s{dst}, 14", f"s_cmp_ge_u32 s{dst}, 14", f"s_cselect_b32 s{dst}, s{S_T2}, s{dst}",
                    f"s_mul_i32 s{dst}, s{dst}, {stride}", f"s_add_u32 s{dst}, s{dst}, s{bd}"]
        u=t-14
        return [f"s_add_u32 s{dst}, s{S_RO}, {u&7}", f"s_and_b32 s{dst}, s{dst}, 7", f"s_add_u32 s{dst}, s{dst}, {u&~7}",
                f"s_mul_i32 s{dst}, s{dst}, {stride}", f"s_add_u32 s{dst}, s{dst}, s{bo}"]
    def offA(self,t): return self.off(t,S_LA,S_AD,S_AO,4096)
    def offW(self,t): return self.off(t,S_LW,S_WD,S_WO,5120)
    def loadA(self, t):
        fr=[self.free.pop(0) for _ in range(4)]; self.A[t]=fr
        G=[[f"buffer_load_dwordx4 {fr[i]}, v{V_C16}, {sr(S_CA)}, s{S_LA} offen offset:{i*1024} sc1"] for i in range(4)]
        G[0]=self.offA(t)+G[0]; return G
    def loadW(self, t, only5=False):
        if only5:
            fr=[None]*4+[self.free.pop(0)]; G=[]
        else:
            fr=[self.free.pop(0) for _ in range(5)]
            G=[[f"buffer_load_dwordx4 {fr[i]}, v{V_C16}, {sr(S_CW)}, s{S_LW} offen offset:{i*1024} sc1"] for i in range(4)]
        self.W[t]=fr
        G+=[[f"buffer_load_dwordx4 {fr[4]}, v{V_C16B}, {sr(S_CW)}, s{S_LW} offen sc1"]]
        G[0]=self.offW(t)+G[0]; return G
    def pre_dma(self, kind, t):
        srd_,so,off = (S_CA,S_LA,self.offA(t)) if kind=='A' else (S_CW,S_LW,self.offW(t))
        G=[[f"buffer_load_dwordx4 v{V_C16}, {sr(srd_)}, s{so} offen offset:{i*1024} sc1 lds @p{kind}{t}"] for i in range(4)]
        G[0]=[f"s_add_u32 m0, s{S_MW}, {PRE_STRIPES[(kind,t)]}"]+off+G[0]
        return G
    def pre_read(self, t, va):
        o=[f"WAITTOK @pA{t},pW{t}"]
        self.A[t]=[self.free.pop(0) for _ in range(4)]
        for i in range(4): self.W[t][i]=self.free.pop(0)
        for kind,fr in (('W',self.W[t]),('A',self.A[t])):
            b=PRE_STRIPES[(kind,t)]
            for i in range(4): o.append(f"ds_read_b128 {fr[i]}, v{va[b>>16]} offset:{(b&65535)+i*1024}")
        return o
    def step(self, t):
        ab = 128 if t<14 else 0
        M=[]
        for n in range(5):
            for q in range(4):
                d=r4('a',ab+(q*5+n)*4)
                M.append(f"{MF} {d}, {self.W[t][n]}, {self.A[t][q]}, {'0' if t in (0,14) else d}")
        self.free += self.A.pop(t)+self.W.pop(t)
        return M

def o_frag(k):
    c,qt=k>>2,k&3
    o=[]; tb=200; d=212+(k%3)*4
    for h in range(2):
        a=((2*c+h)*4+qt)*4
        for r in range(4): o.append(f"v_accvgpr_read_b32 v{tb+h*4+r}, a{a+r}")
    rl=V_NM+2*qt
    for z in range(4): o.append(f"v_pk_mul_f32 v[{tb+2*z}:{tb+2*z+1}], v[{tb+2*z}:{tb+2*z+1}], v[{rl}:{rl+1}]")
    for z in range(4): o.append(f"v_cvt_pk_bf16_f32 v{d+z}, v{tb+2*z}, v{tb+2*z+1}")
    if qt==0: o+= [f"s_lshl_b32 s{S_T0}, s{S_HEAD}, 14", f"s_add_u32 s{S_T0}, s{S_T0}, {c*4096}"]
    o.append(f"buffer_store_dwordx4 {r4('v',d)}, v{V_C16}, {sr(S_AF)}, s{S_T0} offen offset:{qt*1024} sc1")
    return o

def l2pf_groups():
    G=[]
    G.append([f"s_and_b32 s{S_T0}, s{S_CT}, 3", f"s_mul_i32 s{S_T0}, s{S_T0}, 7", f"s_add_u32 s{S_T0}, s{S_T0}, s{S_WAVE}", f"s_lshl_b32 s{S_T0}, s{S_T0}, 13", f"s_add_u32 s{S_T0}, s{S_T0}, {128*4096}",
              f"buffer_load_dword v{V_PF}, v{V_PADDR}, {sr(S_CA)}, s{S_T0} offen sc1 @pf"])
    G.append([f"s_add_u32 s{S_T0}, s{S_T0}, 32768", f"buffer_load_dword v{V_PF}, v{V_PADDR}, {sr(S_CA)}, s{S_T0} offen sc1 @pf"])
    G.append([f"s_and_b32 s{S_T1}, s{S_RT}, 7", f"s_lshl_b32 s{S_T1}, s{S_T1}, 2", f"s_add_u32 s{S_T1}, s{S_T1}, s{S_WAVE}", f"s_lshl_b32 s{S_T1}, s{S_T1}, 13", f"s_add_u32 s{S_T0}, s{S_T1}, {80*8192+16384}",
              f"buffer_load_dword v{V_PF}, v{V_PADDR}, {sr(S_CW)}, s{S_T0} offen sc1 @pf"])
    G.append([f"s_and_b32 s{S_T1}, s{S_RT}, 7", f"s_lshl_b32 s{S_T1}, s{S_T1}, 13", f"s_add_u32 s{S_T0}, s{S_T1}, s{S_WO}",
              f"buffer_load_dword v{V_PF}, v{V_PADDR}, {sr(S_CW)}, s{S_T0} offen sc1 @pf"])
    return G

def attention_and_c(p):
    LA,FPS,DRAIN=OPT['LA'],OPT['FPS'],OPT['DRAIN']
    C=CState()
    c_setup(p)
    att_start(p)
    stamp(p,4)
    p.ext(period(0)); p.ext(period(1,{'mid':arrive("K1_arrA",0)}))
    for j in range(2,30):
        for t in period(j): p.e(t, tag=f"per{j}")
    X={'A':[[f"buffer_load_dword v{V_POLL}, v{V_PADDR}, {sr(S_DBG)}, 0 offen sc1"]],
       'mid':spin("K1_spinA",S_DBG,"0",32)+[f"v_lshlrev_b32 v{V_PADDR}, 7, v{V_LANE}"]}
    npre=3 if OPT['ldspre'] else 0
    if npre:
        X['B']=C.pre_dma('W',0); X['C']=C.pre_dma('A',0); X['D']=C.pre_dma('W',1)
    if OPT['l2pfC']: X['D']=l2pf_groups()
    p.ext(period(30,X))
    X={}
    if npre:
        Z=C.pre_dma('A',1)+C.pre_dma('W',2)+C.pre_dma('A',2)
        X={'A':Z[0:3],'B':Z[3:6],'C':Z[6:9],'D':Z[9:12]}
    p.ext(period(31,X))
    C.free=[r4('v',b) for b in range(232,252 if OPT['stamps'] else 256,4)]+([r4('v',64)] if OPT['stamps'] else [])+[r4('v',b) for b in range(128,192,4)]+[r4('v',b) for b in range(0,32,4)]
    E=[]
    nw=na=npre
    for t in range(npre): E+=C.loadW(t,only5=True)
    if OPT['early']:
        for t in range(npre,npre+3): E+=C.loadW(t)+C.loadA(t)
        nw=na=npre+3
    p.ext(period(32,{'D':E[:16]}))
    p.ext(period(33,{'A':E[16:]}))
    stamp(p,5)
    C.free+=[r4('v',b) for b in range(32,128,4) if not (OPT['stamps'] and b==64)]+[r4('a',b) for b in range(208,256,4)]
    p.e(f"v_add_u32 v224, s{S_MW}, v{V_C16}\nv_add_u32 v225, 0x10000, v224\nv_add_u32 v{V_PF}, 0x20000, v224")
    va={0:224,1:225,2:V_PF}
    if npre:
        if OPT['l2pfC']:
            p.e("WAITTOK @pf")
            p.L.insert(len(p.L)-4, p.L.pop())
        for t in C.pre_read(0,va): p.e(t)
    while na<npre+LA and len(C.free)>=9+16:
        flat(p,C.loadW(nw)+C.loadA(na)); nw+=1; na+=1
    for qt in range(4):
        l=V_L+qt; T=200
        p.e(f"v_mov_b32 v{T}, v{l}\nv_permlane16_swap_b32 v{l}, v{T}\nv_add_f32 v{l}, v{l}, v{T}")
        p.e(f"v_mov_b32 v{T}, v{l}\nv_permlane32_swap_b32 v{l}, v{T}\nv_add_f32 v{l}, v{l}, v{T}")
        p.e(f"v_rcp_f32 v{V_NM+2*qt}, v{l}")
        p.e(f"v_mov_b32 v{V_NM+2*qt+1}, v{V_NM+2*qt}")
    p.e(f"v_and_b32 v{V_PADDR}, 31, v{V_LANE}\nv_lshlrev_b32 v{V_PADDR}, 2, v{V_PADDR}\ns_lshl_b32 s{S_T1}, s{S_RT}, 7")
    kf=0
    for t in range(46):
        if t+1<npre:
            for x in C.pre_read(t+1,va): p.e(x)
        while kf<16 and kf<(t+1)*FPS:
            for x in o_frag(kf): p.e(x)
            kf+=1
            if kf==16: C.free += [r4('a',b) for b in range(80,128,4)]
        if t==DRAIN:
            p.e(f"s_waitcnt vmcnt(0)\nv_mov_b32 v200, 0\nv_mov_b32 v201, 1\ns_mov_b64 exec, 1\nbuffer_store_dword v201, v200, {sr(S_FL)}, s{S_FOFF} offen sc1\ns_mov_b64 exec, -1")
            stamp(p,6)
        if t==14:
            p.e("s_barrier")
            p.e(f"s_mul_i32 s{S_T0}, s{S_WAVE}, 5120\nv_add_u32 v200, s{S_T0}, v{V_C16}\nv_add_u32 v201, 0x14000, v200\nv_add_u32 v205, 40960, v200\nv_add_u32 v206, 40960, v201")
            p.ext(spin("K1_spinO",S_FL,f"s{S_T1}",1))
            stamp(p,7)
            while na<14+LA:
                flat(p,C.loadA(na)); na+=1
            for q in range(4):
                for n in range(5):
                    p.e(f"ds_write_b128 v{201 if q<2 else 206}, {r4('a',128+(q*5+n)*4)} offset:{(q&1)*20480+n*1024}")
            p.e(f"s_lshl_b32 s{S_T0}, s{S_RT}, 6\ns_lshl_b32 s{S_T1}, s{S_WAVE}, 4\ns_add_u32 s{S_T0}, s{S_T0}, s{S_T1}")
            p.e(f"v_and_b32 v202, 15, v{V_LANE}\nv_add_u32 v202, s{S_T0}, v202\nv_mul_u32_u24 v202, 1280, v202")
            p.e(f"v_lshrrev_b32 v203, 4, v{V_LANE}\nv_mul_u32_u24 v203, 40, v203\nv_add_u32 v202, v202, v203\ns_mul_i32 s{S_T1}, s{S_CT}, 160\nv_add_u32 v202, s{S_T1}, v202")
            for n in range(5): p.e(f"buffer_load_dwordx2 v[{212+2*n}:{213+2*n}], v202, {sr(S_XI)}, 0 offen offset:{8*n}")
            srd(p, S_OUT, "s94", "s95", 2048*1280)
            p.e(f"s_mul_i32 s{S_T0}, s{S_WAVE}, 20480\nv_add_u32 v203, s{S_T0}, v{V_C16}\nv_add_u32 v204, 0x14000, v203")
        if t==16:
            p.e("s_waitcnt lgkmcnt(0)\ns_barrier")
            for n in range(5):
                for src in range(4): p.e(f"ds_read_b128 {r4('a',128+(n*4+src)*4)}, v204 offset:{src*5120+n*1024}")
        if 17<=t<22:
            n=t-17
            for r in range(4):
                for src in range(4): p.e(f"v_accvgpr_read_b32 v{192+src}, a{128+(n*4+src)*4+r}")
                p.e("v_add_f32 v192, v192, v193\nv_add_f32 v194, v194, v195\nv_add_f32 v192, v192, v194")
                p.e(f"v_mul_f32 v193, 0x{f2u(-math.log2(math.e)):08x}, v192\nv_exp_f32 v193, v193\nv_add_f32 v193, 1.0, v193\nv_rcp_f32 v193, v193\nv_mul_f32 v192, v192, v193")
                p.e(f"v_accvgpr_write_b32 a{128+n*16+r}, v192")
        for x in C.step(t): p.e(x)
        if t==12: p.e(f"buffer_load_dword v{V_POLL}, v{V_PADDR}, {sr(S_FL)}, s{S_T1} offen sc1")
        if t>=14:
            if nw<46: flat(p,C.loadW(nw)); nw+=1
            if na<46: flat(p,C.loadA(na)); na+=1
        else:
            budget=9
            while budget>0:
                if na<14 and len(C.free)>=9+(8 if t+2<npre else 0):
                    flat(p,C.loadW(nw)+C.loadA(na)); nw+=1; na+=1; budget-=9
                elif na>=14 and len(C.free)>=5+4*LA:
                    flat(p,C.loadW(nw)); nw+=1; budget-=5
                else: break
    stamp(p,8)
    for q in range(4):
        for n in range(5):
            p.e(f"ds_write_b128 v{200 if q<2 else 205}, {r4('a',(q*5+n)*4)} offset:{(q&1)*20480+n*1024}")
    for i in range(10): p.e(f"v_lshlrev_b32 v{100+2*i}, 16, v{212+i}\nv_and_b32 v{101+2*i}, 0xffff0000, v{212+i}")
    for n in range(5):
        for r in range(4): p.e(f"v_accvgpr_read_b32 v{120+n*4+r}, a{128+n*16+r}")
    p.e("s_waitcnt lgkmcnt(0)\ns_barrier")
    for n in range(5):
        for src in range(4): p.e(f"ds_read_b128 {r4('v',(n*4+src)*4)}, v203 offset:{src*5120+n*1024}")
    for n in range(5):
        b=n*16
        for z in (0,2):
            p.e(f"v_pk_add_f32 v[{b+z}:{b+z+1}], v[{b+z}:{b+z+1}], v[{b+4+z}:{b+5+z}]\nv_pk_add_f32 v[{b+8+z}:{b+9+z}], v[{b+8+z}:{b+9+z}], v[{b+12+z}:{b+13+z}]")
            p.e(f"v_pk_add_f32 v[{b+z}:{b+z+1}], v[{b+z}:{b+z+1}], v[{b+8+z}:{b+9+z}]")
            p.e(f"v_pk_fma_f32 v[{100+n*4+z}:{101+n*4+z}], v[{b+z}:{b+z+1}], v[{120+n*4+z}:{121+n*4+z}], v[{100+n*4+z}:{101+n*4+z}]")
            p.e(f"v_cvt_pk_bf16_f32 v{140+n*2+z//2}, v{100+n*4+z}, v{101+n*4+z}")
        p.e(f"buffer_store_dwordx2 v[{140+2*n}:{141+2*n}], v202, {sr(S_OUT)}, 0 offen offset:{8*n}")

def rollup(L, tags_first, label):
    reps=[[i for i in L if i.tag in tg] for tg in tags_first]
    t0=[i.text for i in reps[0]]
    for r in reps[1:]:
        assert [i.text for i in r]==t0, f"loop bodies differ {label}"
    alltags=set(t for tg in tags_first for t in tg)
    first=next(k for k,i in enumerate(L) if i.tag in alltags)
    last=max(k for k,i in enumerate(L) if i.tag in alltags)
    assert all(i.tag in alltags for i in L[first:last+1])
    body=list(reps[0])
    mk=[k for k,i in enumerate(body) if i.kind=='mfma']
    body.insert(mk[-1]+1, I(f"s_cmp_lg_u32 s{S_CNT}, 0"))
    body.insert(mk[-2]+1, I(f"s_sub_u32 s{S_CNT}, s{S_CNT}, 1"))
    assert not any(i.kind=='salu' for i in body[mk[-1]+3:]), [i.text for i in body[mk[-1]:]]
    body.append(I(f"s_cbranch_scc1 {label}"))
    return L[:first]+[I(f"s_mov_b32 s{S_CNT}, {len(reps)}"),I(f".p2align {OPT['align']}"),I(f"{label}:")]+body+L[last+1:]

def k1():
    p=Prog()
    setup(p); stamp(p,0); prologue(p); stamp(p,2); pro_epilogue(p); stamp(p,3); attention_and_c(p); stamp_out(p,10)
    p.e("K1_end:\ns_endpgm")
    rep=[]
    L=finish(p.L, report=rep)
    for r in rep:
        if r[3] and r[3]!='slow': print("; pad in", r, file=sys.stderr)
    L=rollup(L, [[f"per{j+k}" for k in range(4)] for j in range(2,30,4)], "K1_att")
    return L

HDR = open("recurrent_scan__mha_block_cached__glu_gated_reglu__prompt.s.ref").read().split("; Override launch")[0]
KN="recurrent_scan__mha_block_cached__glu_gated_reglu__prompt_kernel"
def main():
    s = HDR
    s += "; @launch grid=(256,1,1) block=(256,1,1) lds=163840\n"
    s += '.amdgcn_target "amdgcn-amd-amdhsa--gfx950"\n.text\n'
    s += head(KN)+text(k1())
    s += ".p2align 8\n.fill 2048, 4, 0xbf800000\n"
    s += kd(KN,512,256)
    return s
if __name__=="__main__":
    for a in sys.argv[2:]:
        k,v=a.split("="); OPT[k]=eval(v)
    open(sys.argv[1],"w").write(main())
```

```python
from gen import *
import gen
MF = "v_mfma_f32_16x16x32_bf16"
OPT = dict(rlgap=3, dbgst=False, rot=False, rotC=True, dmagap=7, fine=False, align=6, earlylds=False, stamps=False, pf=True, codepf=True, LA=5, FPS=2, DRAIN=10, l2pfC=False, ldspre=True, early=True)
WS_FL=60<<20
WS_ST=61<<20
LDS_RL=131072
LDS_CS=131072+6144
S_DBG, S_X, S_WQ, S_WG, S_FL, S_K, S_V, S_AF = 4, 8, 12, 16, 20, 24, 28, 32
S_WAVE=36; S_HEAD=37; S_QB=38; S_SIG=39
S_XOFF=40; S_WQOFF=41; S_WGOFF=42
S_MX=43; S_MW=44
S_KOFF=46; S_VOFF=47; S_CNT=50; S_T0=51; S_T1=52; S_FOFF=53; S_SCALE=54
S_KX=56; S_KW=57; S_RA=58; S_RO=59
S_RT=70; S_CT=71; S_HL=48; S_T2=49
V_S=0; V_P=64; V_Q=128; V_NM=192; V_L=208; V_KA=212; V_VA=216; V_KD=224; V_VD=225; V_LANE=226
V_C16=227; V_C16B=228; V_POLL=229; V_PADDR=230; V_PF=231
V_XD=232; V_WQD=240; V_WGD=244; V_WQA=128; V_WQA2=132; V_WGA=136; V_WGA2=144; V_RL=152; V_CS=192; V_XA=208; V_ONES=248; V_RLA=210; V_RLW=211; V_ST=232; V_CSA=240
S_RS=72; S_RD=76; S_STT=80
S_RO0=84; S_RO1=85
A_K=128; A_V=192
def r4(f,b): return f"{f}[{b}:{b+3}]"
def sr(s): return f"s[{s}:{s+3}]"

def stamp(p,i):
    if OPT['stamps']: p.e(f"s_memtime s[98:99]\ns_memrealtime s[100:101]\ns_waitcnt lgkmcnt(0)\nv_writelane_b32 v254, s98, {2*i}\nv_writelane_b32 v254, s100, {2*i+1}")
def stamp_out(p,n):
    if not OPT['stamps']: return
    p.e("s_waitcnt vmcnt(0) lgkmcnt(0)")
    stamp(p,n-1)
    srd_off(p, 8, 68, 64<<20, 1<<20)
    p.e(f"s_lshl_b32 s3, s2, 2\ns_add_u32 s3, s3, s{S_WAVE}\ns_lshl_b32 s3, s3, 7\nv_mov_b32 v0, s3")
    p.e(f"v_lshlrev_b32 v1, 2, v{V_LANE}\ns_mov_b64 exec, 0xffffffff\nbuffer_store_dword v254, v1, s[8:11], s3 offen\ns_mov_b64 exec, -1")
    if OPT['fine']:
        p.e(f"s_lshl_b32 s3, s3, 1\ns_add_u32 s3, s3, 0x40000\nv_lshlrev_b32 v1, 2, v{V_LANE}\nbuffer_store_dword v{V_FS}, v1, s[8:11], s3 offen")

V_FS=255; S_FI=96
def fine_pre():  return ["s_memtime s[98:99]"] if OPT['fine'] else []
def fine_post(): return [f"v_writelane_b32 v{V_FS}, s98, m0_FI", ] if False else ([f"s_mov_b32 s97, m0", f"s_mov_b32 m0, s{S_FI}", f"v_writelane_b32 v{V_FS}, s98, m0", f"S_mov_b32 m0, s97", f"S_add_u32 s{S_FI}, s{S_FI}, 1"] if OPT['fine'] else [])
class Gaps:
    def __init__(self, mf): self.mf=mf; self.f={}
    def put(self, g, t, post=False): self.f.setdefault(g,[]).append((t,post))
    def group(self, g, grp):
        k=next(i for i,t in enumerate(grp) if not t.startswith('s_'))
        for t in grp[:k]: self.put(max(g-1,0), t)
        self.put(g, grp[k])
        for t in grp[k+1:]: self.put(g+1, t)
    def emit(self):
        def key(x):
            t=x[0]
            if t.startswith(('s_','WAITTOK')): return 0
            if t.startswith('v_writelane'): return 0.3
            if t.startswith('S_'): return 0.6
            return 1 if t.startswith(('ds_','buffer_','global_')) else 2
        out=[]
        n=len(self.mf)
        for g in range(max([n]+[k+1 for k in self.f])):
            if g<n and self.mf[g]: out.append(self.mf[g])
            out += [x[0].replace('S_','s_',1) if x[0].startswith('S_') else x[0] for x in sorted(self.f.get(g,[]), key=key)]
        return out

def setup(p):
    p.e("s_cmp_ge_u32 s2, 256\ns_cbranch_scc1 K1_end")
    p.e("s_load_dwordx4 s[24:27], s[0:1], 8\ns_load_dwordx2 s[60:61], s[0:1], 24\ns_load_dwordx4 s[64:67], s[0:1], 48")
    p.e("s_load_dwordx2 s[68:69], s[0:1], 88\ns_load_dwordx2 s[62:63], s[0:1], 80\ns_load_dwordx2 s[92:93], s[0:1], 0\ns_load_dwordx2 s[94:95], s[0:1], 72")
    p.e("s_load_dwordx2 s[86:87], s[0:1], 32\ns_load_dwordx2 s[88:89], s[0:1], 64")
    if OPT['codepf']:
        p.e(f"s_getpc_b64 s[6:7]\ns_lshr_b32 s{S_T0}, s2, 3\ns_mul_i32 s{S_T0}, s{S_T0}, {18*128}")
        p.e(f"v_min_u32 v52, 17, v0\nv_lshlrev_b32 v52, 7, v52\nv_add_u32 v52, s{S_T0}, v52")
        p.e(f"global_load_dword v{V_PF}, v52, s[6:7] @pf")
    p.e(f"v_and_b32 v{V_LANE}, 63, v0\nv_lshrrev_b32 v1, 6, v0")
    p.e(f"v_readfirstlane_b32 s{S_WAVE}, v1")
    p.e(f"s_and_b32 s3, s2, 7\ns_lshr_b32 s4, s2, 3\ns_and_b32 s{S_HL}, s4, 3\ns_lshr_b32 s{S_QB}, s4, 2")
    p.e(f"s_lshl_b32 s{S_HEAD}, s3, 2\ns_add_u32 s{S_HEAD}, s{S_HEAD}, s{S_HL}")
    p.e(f"s_lshl_b32 s{S_SIG}, s{S_HL}, 3\ns_add_u32 s{S_SIG}, s{S_SIG}, s3")
    p.e(f"s_lshr_b32 s{S_RT}, s4, 2\ns_lshr_b32 s6, s3, 1\ns_lshl_b32 s6, s6, 3\ns_add_u32 s{S_RT}, s{S_RT}, s6")
    p.e(f"s_and_b32 s{S_CT}, s4, 3\ns_and_b32 s6, s3, 1\ns_lshl_b32 s6, s6, 2\ns_add_u32 s{S_CT}, s{S_CT}, s6")
    L=V_LANE
    p.e(f"v_lshrrev_b32 v1, 4, v{L}\nv_bfe_u32 v2, v{L}, 2, 2\nv_and_b32 v3, 3, v{L}\nv_and_b32 v4, 15, v{L}\nv_lshrrev_b32 v5, 3, v{L}\nv_and_b32 v6, 7, v{L}")
    p.e(f"s_lshl_b32 s6, s{S_WAVE}, 6\nv_add_u32 v7, s6, v5\nv_mul_u32_u24 v7, 1280, v7")
    p.e("v_xor_b32 v8, v6, v1\nv_xor_b32 v9, 4, v8\nv_lshl_add_u32 v8, v8, 4, v7\nv_lshl_add_u32 v9, v9, 4, v7")
    for i in range(8): p.e(f"v_add_u32 v{V_XD+i}, {i*10240-1024*(i&3)}, v{8+(i&1)}")
    p.e(f"s_lshl_b32 s6, s{S_WAVE}, 4\nv_add_u32 v7, s6, v1\nv_lshlrev_b32 v7, 13, v7")
    p.e("v_lshlrev_b32 v8, 2, v1\nv_xor_b32 v8, v4, v8\nv_lshl_add_u32 v8, v8, 4, v7")
    for i in range(4): p.e(f"v_add_u32 v{V_WQD+i}, {i*(32768-1024)}, v8")
    p.e(f"s_and_b32 s6, s{S_WAVE}, 1\ns_lshl_b32 s6, s6, 5\nv_add_u32 v7, s6, v5\nv_mul_u32_u24 v7, 3456, v7")
    p.e("v_and_b32 v8, 2, v5\nv_xor_b32 v8, v6, v8\nv_xor_b32 v9, 4, v8\nv_lshl_add_u32 v8, v8, 4, v7\nv_lshl_add_u32 v9, v9, 4, v7")
    for i in range(4): p.e(f"v_add_u32 v{V_WGD+i}, {i*(8*3456-1024)}, v{8+(i&1)}")
    if OPT['rot']:
        p.e(f"s_mul_i32 s6, s{S_HL}, 5\ns_add_u32 s6, s6, 1\ns_lshr_b32 s6, s6, 1\ns_add_u32 s6, s6, s{S_QB}\ns_add_u32 s6, s6, s3")
        for z in range(2): p.e("s_sub_u32 s7, s6, 10\ns_cmp_ge_u32 s6, 10\ns_cselect_b32 s6, s7, s6")
        p.e(f"s_mov_b32 s{S_KX}, s6\ns_mov_b32 s{S_KW}, s6")
    else: p.e(f"s_mov_b32 s{S_KX}, 0\ns_mov_b32 s{S_KW}, 0")
    p.e(f"s_lshl_b32 s{S_MX}, s{S_WAVE}, 13\ns_lshl_b32 s{S_MW}, s{S_WAVE}, 12")
    p.e("s_waitcnt lgkmcnt(0)")
    p.e(f"s_mul_i32 s6, s{S_QB}, {256*1280}")
    srd_off(p, S_X, 92, "s6", 256*1280)
    p.e(f"s_lshl_b32 s7, s{S_HEAD}, 2\ns_add_u32 s7, s7, s{S_WAVE}\ns_lshl_b32 s7, s7, 1")
    p.e(f"v_lshrrev_b32 v48, 5, v{V_LANE}\nv_add_u32 v48, s7, v48\nv_mul_u32_u24 v49, 1280, v48\nv_and_b32 v50, 31, v{V_LANE}\nv_lshl_add_u32 v49, v50, 3, v49")
    for i in range(5): p.e(f"buffer_load_dwordx2 v[{10+2*i}:{11+2*i}], v49, {sr(S_X)}, 0 offen offset:{256*i}")
    p.e(f"s_lshl_b32 s6, s{S_HEAD}, 8")
    srd_off(p, S_WQ, 60, "s6", 0)
    p.e(f"s_sub_u32 s{S_WQ+2}, {640*8192}, s6")
    p.e(f"s_cmp_lt_u32 s{S_WAVE}, 2\ns_cselect_b32 s52, s64, s66\ns_cselect_b32 s53, s65, s67")
    p.e(f"s_lshl_b32 s6, s{S_SIG}, 7")
    srd_off(p, S_WG, 52, "s6", 0)
    p.e(f"s_sub_u32 s7, {640*3456}, s6\ns_cmp_lt_u32 s{S_SIG}, 27\ns_cselect_b32 s{S_WG+2}, s7, 0")

def setup2(p):
    p.e(f"s_lshl_b32 s6, s{S_HEAD}, 19")
    srd_off(p, S_V, 26, "s6", 524288)
    srd_off(p, S_K, 24, "s6", 524288)
    p.e(f"s_lshl_b32 s6, s{S_QB}, 2\ns_add_u32 s6, s6, s{S_WAVE}\ns_mul_i32 s6, s6, {AF_RT}\ns_add_u32 s6, s6, {WS_AF}")
    srd_off(p, S_AF, 68, "s6", NSTEP*4096)
    srd_off(p, S_FL, 68, WS_FL, 4096)
    p.e(f"s_mov_b32 s{S_KOFF}, 0\ns_mov_b32 s{S_VOFF}, 0")
    p.e("v_lshl_add_u32 v7, v1, 3, v2\nv_lshlrev_b32 v8, 8, v7\nv_lshl_add_u32 v8, v3, 4, v8\nv_add_u32 v8, 0x10000, v8")
    p.e(f"v_xor_b32 v51, s{S_WAVE}, v2")
    for c in range(4): p.e(f"v_xor_b32 v9, {c}, v51\nv_lshl_add_u32 v{V_WQA+c}, v9, 6, v8\nv_add_u32 v{V_WQA2+c}, 0x10000, v{V_WQA+c}")
    p.e("v_lshlrev_b32 v8, 7, v7\nv_lshl_add_u32 v8, v3, 3, v8\nv_add_u32 v8, 0x14000, v8")
    p.e(f"v_lshrrev_b32 v9, 1, v2\nv_xor_b32 v51, s{S_WAVE}, v1\nv_and_b32 v51, 1, v51\nv_lshl_add_u32 v51, v51, 1, v9")
    p.e(f"s_lshr_b32 s6, s{S_WAVE}, 1\ns_lshl_b32 s6, s6, 13\nv_add_u32 v8, s6, v8")
    for t in range(4):
        p.e(f"v_xor_b32 v9, {t}, v51\nv_lshl_add_u32 v{V_WGA+t}, v9, 5, v8\nv_xor_b32 v{V_WGA+4+t}, 0x2000, v{V_WGA+t}")
        p.e(f"v_add_u32 v{V_WGA2+t}, 0x10000, v{V_WGA+t}\nv_add_u32 v{V_WGA2+4+t}, 0x10000, v{V_WGA+4+t}")
    p.e(f"s_lshl_b32 s6, s{S_WAVE}, 6\nv_add_u32 v8, s6, v4\nv_lshlrev_b32 v8, 7, v8\nv_lshrrev_b32 v9, 1, v4\nv_xor_b32 v9, v9, v1")
    p.e(f"v_lshl_add_u32 v{V_XA}, v9, 4, v8\nv_xor_b32 v9, 4, v9\nv_lshl_add_u32 v{V_XA+1}, v9, 4, v8")
    p.e(f"v_lshl_add_u32 v8, v2, 4, v3\nv_lshlrev_b32 v8, 8, v8\nv_xor_b32 v9, v1, v4\ns_lshl_b32 s6, s{S_WAVE}, 2\nv_xor_b32 v9, s6, v9")
    for c in range(4): p.e(f"v_xor_b32 v51, {4*c}, v9\nv_lshl_add_u32 v{V_KA+c}, v51, 4, v8")
    p.e("v_lshl_add_u32 v8, v1, 4, v2\nv_lshlrev_b32 v8, 8, v8\nv_lshl_add_u32 v8, v3, 3, v8\nv_add_u32 v8, 0x10000, v8")
    p.e("v_and_b32 v9, 1, v1\nv_lshl_add_u32 v9, v9, 2, v2")
    for d in range(8): p.e(f"v_xor_b32 v51, {d}, v9\nv_lshl_add_u32 v{V_VA+d}, v51, 5, v8")
    p.e(f"s_lshl_b32 s6, s{S_WAVE}, 4\nv_add_u32 v8, s6, v1\nv_lshlrev_b32 v8, 8, v8")
    p.e(f"s_lshl_b32 s6, s{S_WAVE}, 2\nv_add_u32 v9, s6, v1\nv_xor_b32 v9, v9, v4\nv_lshl_add_u32 v{V_KD}, v9, 4, v8")
    p.e(f"s_and_b32 s6, s{S_WAVE}, 1\ns_lshl_b32 s6, s6, 2\nv_add_u32 v9, s6, v1\nv_lshlrev_b32 v9, 1, v9\nv_xor_b32 v9, v9, v4\nv_lshl_add_u32 v{V_VD}, v9, 4, v8")
    p.e(f"v_lshlrev_b32 v{V_C16}, 4, v{V_LANE}\nv_add_u32 v{V_C16B}, 4096, v{V_C16}")
    p.e("s_cmp_lt_u32 s2, 128\ns_cselect_b32 s86, s86, s88\ns_cselect_b32 s87, s87, s89\ns_and_b32 s6, s2, 127\ns_mul_i32 s6, s6, 40960")
    srd_off(p, S_RS, 86, "s6", 40960)
    srd_off(p, S_RD, 68, WS_WF, 8*WF_CT)
    p.e(f"s_cmp_lt_u32 s2, {NSTEP}\ns_cselect_b32 s{S_RS+2}, s{S_RS+2}, 0\ns_cselect_b32 s{S_RD+2}, s{S_RD+2}, 0")
    p.e(f"s_mul_i32 s{S_RO0}, s{S_WAVE}, {2*WF_CT}\ns_mul_i32 s6, s2, 5120\ns_add_u32 s{S_RO0}, s{S_RO0}, s6\ns_add_u32 s{S_RO1}, s{S_RO0}, {WF_CT}")
    p.e(f"s_add_u32 s6, s{S_MX}, {LDS_RL}\nv_lshrrev_b32 v8, 2, v{V_LANE}\nv_mul_u32_u24 v8, 160, v8\nv_mul_u32_u24 v9, 40, v3\nv_add3_u32 v{V_RLA}, v8, v9, s6\nv_add_u32 v{V_RLW}, s6, v{V_C16}")
    p.e(f"s_lshl_b32 s6, s{S_QB}, 11\ns_add_u32 s6, s6, {WS_ST}")
    srd_off(p, S_STT, 68, "s6", 2048)
    for r in range(4): p.e(f"v_mov_b32 v{V_ONES+r}, 0x3f803f80")
    srd(p, S_DBG, "s62", "s63", 256)
    if OPT['fine']: p.e(f"s_mov_b32 s{S_FI}, 0\nv_mov_b32 v{V_FS}, 0")

def adv_mod(r,n): return [f"s_add_u32 s{r}, s{r}, 1", f"s_cmp_eq_u32 s{r}, {n}", f"s_cselect_b32 s{r}, 0, s{r}"]
def wslot(c): return (c+1)%3
def x_dma(c):
    G=[]
    for h in range(2):
        for i in range(4):
            g=[]
            if i==0: g.append(f"s_add_u32 m0, s{S_MX}, {(c&1)*32768+h*4096}")
            if i==0 and h==0: g.append(f"s_lshl_b32 s{S_XOFF}, s{S_KX}, 7")
            g.append(f"buffer_load_dwordx4 v{V_XD+h*4+i}, {sr(S_X)}, s{S_XOFF} offen offset:{i*1024} lds @x{c}")
            if i==1 and h==0: g+=adv_mod(S_KX,10)
            G.append(g)
    return G
def w_dma(c):
    G=[]
    o=65536+wslot(c)*32768
    for base,lo,srd_,so,st in ((V_WQD,0,S_WQ,S_WQOFF,64*8192),(V_WGD,16384,S_WG,S_WGOFF,64*3456)):
        for i in range(4):
            g=[]
            if i==0: g+= [f"s_add_u32 m0, s{S_MW}, {o+lo}", f"s_mul_i32 s{so}, s{S_KW}, {st}"]
            g.append(f"buffer_load_dwordx4 v{base+i}, {sr(srd_)}, s{so} offen offset:{i*1024} lds @w{c}")
            if i==1 and lo: g+=adv_mod(S_KW,10)
            G.append(g)
    return G
def kv_dma(kind, j):
    G=[]
    lo,vd,srd_,so = (0,V_KD,S_K,S_KOFF) if kind=='K' else (65536,V_VD,S_V,S_VOFF)
    for i in range(4):
        g=[]
        if i==0: g.append(f"s_add_u32 m0, s{S_MW}, {lo+(j&3)*16384}")
        g.append(f"buffer_load_dwordx4 v{vd}, {sr(srd_)}, s{so} offen offset:{i*1024} lds @{kind}{j}")
        if i==3: g.append(f"s_add_u32 s{so}, s{so}, 16384")
        G.append(g)
    return G
def flat(p,G):
    for g in G:
        for t in g: p.e(t)

def pro_areads(T, c):
    b=192+(T%4)*8; ws=wslot(c); o=(ws&1)*32768 if ws<2 else 0
    R=[]
    for s in range(2):
        for hf in range(2):
            d=b+s*4+hf*2
            if T<8:
                R.append(f"ds_read_b64_tr_b16 a[{d}:{d+1}], v{(V_WQA if ws<2 else V_WQA2)+(T>>1)} offset:{o+s*8192+hf*1024+(T&1)*8}")
            else:
                R.append(f"ds_read_b64_tr_b16 a[{d}:{d+1}], v{(V_WGA if ws<2 else V_WGA2)+(T-8)} offset:{o+s*4096+hf*512}")
    return R
def pro_breads(c):
    st=c&1
    return [f"ds_read_b128 {r4('a',128+st*32+(qt*2+s)*4)}, v{V_XA+s} offset:{st*32768+qt*2048}" for qt in range(4) for s in range(2)]


V_Z=252
def arrive(label, word_off_expr):
    o=[I(f"s_cmp_lg_u32 s{S_WAVE}, 0"), I(f"s_cbranch_scc1 {label}")]
    for t in [f"s_lshl_b32 s{S_T0}, s{S_QB}, 5", f"v_mov_b32 v{V_Z+1}, 1", "s_mov_b64 exec, 1",
              f"buffer_atomic_add v{V_Z+1}, v{V_Z}, {sr(S_DBG)}, s{S_T0} offen offset:{word_off_expr} sc1", "s_mov_b64 exec, -1"]:
        o.append(I(t,'slow'))
    o.append(I(f"{label}:"))
    return o

def pro_chunk(c):
    st=c&1
    mf=[]; tg=[]
    for T in range(16):
        tg.append(len(mf))
        for qt in range(4):
            for s in range(2):
                acc = r4('v',(T*4+qt)*4) if T<8 else r4('a',((T-8)*4+qt)*4)
                cc = "0" if (c==0 and s==0) else acc
                mf.append(f"{MF} {acc}, {r4('a',192+(T%4)*8+s*4)}, {r4('a',128+st*32+(qt*2+s)*4)}, {cc}")
        if T in (0,1,8,9):
            acc=r4('v',V_CS+((T>>3)*2+(T&1))*4)
            for s in range(2):
                mf.append(f"{MF} {acc}, {r4('a',192+(T%4)*8+s*4)}, {r4('v',V_ONES)}, {'0' if (c==0 and s==0) else acc}")
    G=Gaps(mf)
    for T in range(14):
        for k,t in enumerate(pro_areads(T+2, c)): G.put(tg[T]+2*k, t)
    D=[]; gap=OPT['dmagap']
    g00=1
    if c==0: D+=x_dma(2); g00=9
    if 1<=c<=7: D+=w_dma(c+2)+x_dma(c+2)
    if c==7:
        D.insert(0,[f"s_lshl_b32 s{S_T1}, s{S_QB}, 5", f"s_add_u32 s{S_T1}, s{S_T1}, 16", f"buffer_load_dword v{V_POLL}, v{V_Z}, {sr(S_DBG)}, s{S_T1} offen sc1"]); gap=6
    if c==8:
        gap=OPT['rlgap']
        for qt in range(4): D.append([f"buffer_load_dwordx2 v[{V_ST+2*qt}:{V_ST+2*qt+1}], v{V_PADDR}, {sr(S_STT)}, 0 offen offset:{qt*128} sc1"])
        for pr in range(2):
            for i in range(5):
                D.append([f"buffer_load_dwordx4 {r4('v',V_RL+pr*20+i*4)}, v{V_RL+20+i*4}, {sr(S_RS)}, 0 offen offset:{pr*160}"])
    if c==9:
        g=71
        for pr in range(2):
            for i in range(5): G.put(g, f"ds_write_b128 v{V_RLW}, {r4('v',V_RL+pr*20+i*4)} offset:{i*1024}"); g+=2
            for nt in range(5):
                d=V_RL+pr*20+nt*4
                G.put(g, f"ds_read_b64_tr_b16 v[{d}:{d+1}], v{V_RLA} offset:{nt*8}"); g+=1
                G.put(g, f"ds_read_b64_tr_b16 v[{d+2}:{d+3}], v{V_RLA} offset:{nt*8+16*160}"); g+=1
        g+=2
        for pr in range(2):
            for nt in range(5):
                va,o=(V_C16,nt*1024) if nt<4 else (V_C16B,0)
                G.put(g, f"buffer_store_dwordx4 {r4('v',V_RL+pr*20+nt*4)}, v{va}, {sr(S_RD)}, s{S_RO0+pr} offen offset:{o} sc1"); g+=2
        assert g<=len(mf), g
        gap=4
        D=kv_dma('K',0)+kv_dma('K',1)+kv_dma('V',0)+kv_dma('V',1)
    for k,g in enumerate(D): G.group((g00+gap*k)|1, g)
    if c==3 and OPT['pf']:
        for t in [f"s_lshl_b32 s{S_T0}, s{S_QB}, 1", f"s_lshr_b32 s{S_T1}, s{S_WAVE}, 1", f"s_add_u32 s{S_T0}, s{S_T0}, s{S_T1}", f"s_lshl_b32 s{S_T0}, s{S_T0}, 12",
                  f"s_and_b32 s{S_T1}, s{S_WAVE}, 1", f"s_lshl_b32 s{S_T1}, s{S_T1}, 31", f"s_or_b32 s{S_T2}, s{S_T0}, s{S_T1}", f"s_xor_b32 s{S_T0}, s{S_T2}, 0x80000000"]: G.put(110,t)
        G.put(113, f"buffer_load_dword v{V_PF}, v{V_PADDR}, {sr(S_K)}, s{S_T2} offen @pf")
        G.put(115, f"buffer_load_dword v{V_PF}, v{V_PADDR}, {sr(S_V)}, s{S_T0} offen @pf")
    out=None
    if c<9:
        g0=tg[14]
        w = f"WAITTOK lgkmcnt(0) @x{c+1},w{c+1}"+(",st" if c==1 else "")
        for t in fine_pre()+[w,"s_barrier"]+fine_post(): G.put(g0,t)
        R=pro_breads(c+1); A0=pro_areads(0,c+1); A1=pro_areads(1,c+1)
        for k,t in enumerate([R[0],R[1]]+A0+R[2:]+A1): G.put(g0+k,t)
    out=G.emit()
    if c==1: out+=arrive("K1_arrS",16)
    if c==7:
        out+=spin("K1_spinS",S_DBG,f"s{S_T1}",32,V_Z)
        out+=[f"v_and_b32 v{V_PADDR}, 15, v{V_LANE}", f"s_lshl_b32 s{S_T0}, s{S_WAVE}, 6", f"v_add_u32 v{V_PADDR}, s{S_T0}, v{V_PADDR}", f"v_lshlrev_b32 v{V_PADDR}, 3, v{V_PADDR}"]
    return out

def ln_stats(p):
    for i in range(10): p.e(f"v_lshlrev_b32 v{20+2*i}, 16, v{10+i}\nv_and_b32 v{21+2*i}, 0xffff0000, v{10+i}")
    def red32(r, t):
        for m in ("quad_perm:[1,0,3,2]","quad_perm:[2,3,0,1]","row_half_mirror","row_mirror"):
            p.e(f"v_add_f32_dpp v{r}, v{r}, v{r} {m} row_mask:0xf bank_mask:0xf")
        p.e(f"v_mov_b32 v{t}, v{r}\nv_permlane16_swap_b32 v{r}, v{t}\nv_add_f32 v{r}, v{r}, v{t}")
    p.e("v_pk_add_f32 v[40:41], v[20:21], v[22:23]")
    for i in range(24,40,2): p.e(f"v_pk_add_f32 v[40:41], v[40:41], v[{i}:{i+1}]")
    p.e("v_add_f32 v40, v40, v41")
    red32(40, 41)
    p.e(f"v_mul_f32 v40, 0x{f2u(-1.0/640):08x}, v40")
    for i in range(20,40,2): p.e(f"v_pk_add_f32 v[{i}:{i+1}], v[{i}:{i+1}], v[40:41] op_sel_hi:[1,0]")
    p.e("v_pk_mul_f32 v[42:43], v[20:21], v[20:21]")
    for i in range(22,40,2): p.e(f"v_pk_fma_f32 v[42:43], v[{i}:{i+1}], v[{i}:{i+1}], v[42:43]")
    p.e("v_add_f32 v41, v42, v43")
    red32(41, 42)
    p.e(f"v_mul_f32 v41, 0x{f2u(1.0/640):08x}, v41")
    bf16_round(p,40,40); bf16_round(p,41,41)
    p.e(f"v_add_f32 v41, 0x{f2u(1e-5):08x}, v41"); bf16_round(p,41,41)
    p.e("v_sqrt_f32 v41, v41"); bf16_round(p,41,41)
    p.e("v_rcp_f32 v41, v41")
    p.e("v_lshlrev_b32 v48, 3, v48\ns_mov_b32 exec_lo, 1\ns_mov_b32 exec_hi, 1")
    p.e(f"buffer_store_dwordx2 v[40:41], v48, {sr(S_STT)}, 0 offen sc1 @st\ns_mov_b64 exec, -1")

def prologue(p):
    flat(p, x_dma(0)+w_dma(0)+x_dma(1)+w_dma(1)+w_dma(2))
    if OPT['pf']:
        p.e(f"s_mul_i32 s6, s{S_QB}, 56\ns_add_u32 s6, s6, 192\ns_mul_i32 s7, s6, 3456")
        p.e(f"s_lshr_b32 s{S_T0}, s{S_WAVE}, 1\ns_mul_i32 s{S_T0}, s{S_T0}, 28\ns_add_u32 s6, s6, s{S_T0}\ns_lshl_b32 s6, s6, 13")
        p.e(f"s_and_b32 s{S_T0}, s{S_WAVE}, 1\ns_lshl_b32 s{S_T0}, s{S_T0}, 31\ns_or_b32 s7, s7, s{S_T0}\ns_xor_b32 s{S_T0}, s{S_T0}, 0x80000000\ns_or_b32 s6, s6, s{S_T0}")
        p.e(f"v_min_u32 v52, 55, v{V_LANE}\nv_mul_u32_u24 v53, 3456, v52")
        p.e(f"v_lshrrev_b32 v54, 1, v52\nv_lshlrev_b32 v54, 13, v54\nv_and_b32 v52, 1, v52\nv_lshl_add_u32 v54, v52, 7, v54")
        p.e(f"buffer_load_dword v{V_PF}, v53, {sr(S_WG)}, s7 offen @pf")
        p.e(f"buffer_load_dword v{V_PF}, v54, {sr(S_WQ)}, s6 offen @pf")
        p.e(f"v_and_b32 v{V_PADDR}, 31, v{V_LANE}\nv_lshlrev_b32 v{V_PADDR}, 7, v{V_PADDR}")
    setup2(p)
    for i in range(5):
        d=V_RL+20+i*4
        p.e(f"v_add_u32 v52, {64*i}, v{V_LANE}\nv_mul_u32_u24 v53, 6554, v52\nv_lshrrev_b32 v53, 16, v53\nv_mul_u32_u24 v54, 10, v53\nv_sub_u32 v52, v52, v54")
        p.e(f"v_mul_u32_u24 v53, 1280, v53\nv_lshl_add_u32 v53, v52, 4, v53\ns_mul_i32 s{S_T0}, s{S_WAVE}, 320\nv_add_u32 v{d}, s{S_T0}, v53")
    p.e(f"v_mov_b32 v{V_Z}, 0")
    ln_stats(p)
    p.e("WAITTOK @x0,w0\ns_barrier")
    stamp(p,1)
    for t in pro_breads(0)+pro_areads(0,0)+pro_areads(1,0): p.e(t)
    for c in range(10): p.ext(pro_chunk(c))

def pro_epilogue(p):
    p.e(f"v_lshrrev_b32 v{V_CSA}, 4, v{V_LANE}\nv_lshlrev_b32 v{V_CSA}, 4, v{V_CSA}\ns_lshl_b32 s{S_T0}, s{S_WAVE}, 7\ns_add_u32 s{S_T0}, s{S_T0}, {LDS_CS}\nv_add_u32 v{V_CSA}, s{S_T0}, v{V_CSA}")
    for c in range(1,4): p.e(f"v_xor_b32 v{V_CSA+c}, {c*128}, v{V_CSA}")
    p.e("s_mov_b32 exec_lo, 0x00010001\ns_mov_b32 exec_hi, 0x00010001")
    for k in range(4): p.e(f"ds_write_b128 v{V_CSA}, {r4('v',V_CS+k*4)} offset:{(k&1)*64+(k>>1)*512}")
    p.e("s_mov_b64 exec, -1")
    p.e("s_waitcnt lgkmcnt(0)\ns_barrier")
    def csreg(T): return V_CS+T*4 if T<4 else (T-4)*4
    def csread(T): p.e(f"ds_read_b128 {r4('v',csreg(T))}, v{V_CSA+((T&7)>>1)} offset:{(T&1)*64+(T>>3)*512}")
    for T in range(4): csread(T)
    flat(p, kv_dma('K',2))
    sc = math.log2(math.e)/math.sqrt(128.0)
    for qt in range(4): p.e(f"v_mul_f32 v{244+qt}, 0x{f2u(sc):08x}, v{V_ST+2*qt+1}\nv_mul_f32 v{248+qt}, v{V_ST+2*qt+1}, v{V_ST+2*qt+1}")
    def bc(r):
        return f"v[{r&~1}:{(r&~1)+1}]", r&1
    def pkfma(d, a, breg, c):
        pr,o=bc(breg); return f"v_pk_fma_f32 v[{d}:{d+1}], v[{a}:{a+1}], {pr}, v[{c}:{c+1}] op_sel:[0,{o},0] op_sel_hi:[1,{o},1]"
    def pkmul(d, a, breg):
        pr,o=bc(breg); return f"v_pk_mul_f32 v[{d}:{d+1}], v[{a}:{a+1}], {pr} op_sel:[0,{o}] op_sel_hi:[1,{o}]"
    for T in range(8):
        for qt in range(4):
            b=(T*4+qt)*4
            for z in (0,2): p.e(pkfma(b+z, csreg(T)+z, V_ST+2*qt, b+z))
            for z in (0,2): p.e(pkmul(b+z, b+z, 244+qt))
            d=V_Q+(qt*4+(T>>1))*4+(T&1)*2
            p.e(f"v_cvt_pk_bf16_f32 v{d}, v{b}, v{b+1}\nv_cvt_pk_bf16_f32 v{d+1}, v{b+2}, v{b+3}")
        if T<3:
            for TT in range(4+4*T,8+4*T): csread(TT)
    p.e(f"s_waitcnt lgkmcnt(0)\ns_cmp_lt_u32 s{S_WAVE}, 2\ns_cbranch_scc0 K1_hB")
    for var in range(2):
        if var==1: p.e("s_branch K1_hdone\nK1_hB:")
        for t in range(4):
            for qt in range(4):
                g=(t*4+qt)*4; tb=48+((t*4+qt)&1)*8
                for r in range(4): p.e(f"v_accvgpr_read_b32 v{tb+r}, a{g+r}\nv_accvgpr_read_b32 v{tb+4+r}, a{64+g+r}")
                for z in (0,2): p.e(pkfma(tb+z, csreg(8+t)+z, V_ST+2*qt, tb+z)); p.e(pkfma(tb+4+z, csreg(12+t)+z, V_ST+2*qt, tb+4+z))
                gb, ub = (tb,tb+4) if var==0 else (tb+4,tb)
                for r in range(4): p.e(f"v_max_f32 v{gb+r}, 0, v{gb+r}")
                for z in (0,2): p.e(pkmul(ub+z, ub+z, 248+qt))
                for z in (0,2): p.e(f"v_pk_mul_f32 v[{tb+z}:{tb+z+1}], v[{tb+z}:{tb+z+1}], v[{tb+4+z}:{tb+5+z}]")
                d=64+((t>>1)*4+qt)*4+(t&1)*2
                p.e(f"v_cvt_pk_bf16_f32 v{d}, v{tb}, v{tb+1}\nv_cvt_pk_bf16_f32 v{d+1}, v{tb+2}, v{tb+3}")
    p.e("K1_hdone:")
    p.e(f"s_lshl_b32 s{S_T0}, s{S_SIG}, 1\ns_and_b32 s{S_T1}, s{S_WAVE}, 1\ns_add_u32 s{S_T0}, s{S_T0}, s{S_T1}\ns_add_u32 s{S_T0}, s{S_T0}, 128\ns_lshl_b32 s{S_T0}, s{S_T0}, 12\ns_xor_b32 s{S_T1}, s{S_T0}, 4096")
    for c2 in range(2):
        for qt in range(4):
            p.e(f"buffer_store_dwordx4 {r4('v',64+(c2*4+qt)*4)}, v{V_C16}, {sr(S_AF)}, s{S_T0+c2} offen offset:{qt*1024} sc1")
    p.e(f"s_lshl_b32 s{S_T0}, s{S_QB}, 2\ns_add_u32 s{S_T0}, s{S_T0}, s{S_WAVE}\ns_lshl_b32 s{S_T0}, s{S_T0}, 5\ns_add_u32 s{S_T0}, s{S_T0}, s{S_HEAD}\ns_lshl_b32 s{S_FOFF}, s{S_T0}, 2")
    p.e(f"s_mov_b64 exec, 1\nbuffer_store_dword v{V_Z}, v{V_Z}, {sr(S_FL)}, s{S_FOFF} offen sc1 @pub\ns_mov_b64 exec, -1")
    for r in range(64,128): p.e(f"v_accvgpr_write_b32 a{r}, 0")
    for r in range(4): p.e(f"v_mov_b32 v{V_L+r}, 0")

def kreads(j, kts):
    return [f"ds_read_b128 {r4('a',A_K+(kt*4+c)*4)}, v{V_KA+c} offset:{(j&3)*16384+kt*1024}" for kt in kts for c in range(4)]
def vreads(j, dts):
    R=[]
    for dt in dts:
        for u in range(2):
            for hf in range(2):
                d=A_V+(dt*2+u)*4+hf*2
                R.append(f"ds_read_b64_tr_b16 a[{d}:{d+1}], v{V_VA+dt} offset:{(j&3)*16384+u*2048+hf*1024}")
    return R
def qk(u, zero=False):
    M=[]
    for kt in (2*u,2*u+1):
        for qt in range(4):
            d=r4('v',V_S+(kt*4+qt)*4)
            for c in range(4):
                cc = d if c else ("0" if zero else r4('v',V_NM+qt*4))
                M.append(f"{MF} {d}, {r4('a',A_K+(kt*4+c)*4)}, {r4('v',V_Q+(qt*4+c)*4)}, {cc}")
    return M
def pv(j, dts, zero=False):
    M=[]
    for dt in dts:
        for qt in range(4):
            d=r4('a',(dt*4+qt)*4)
            for u in range(2):
                M.append(f"{MF} {d}, {r4('a',A_V+(dt*2+u)*4)}, {r4('v',V_P+(j&1)*32+(u*4+qt)*4)}, {'0' if zero and u==0 else d}")
    return M
def softmax(j, kt):
    X=[];A=[];C=[]
    u=kt>>1
    for qt in range(4):
        b=V_S+(kt*4+qt)*4
        for r in range(4):
            X.append(f"v_exp_f32 v{b+r}, v{b+r}")
            A.append(f"v_add_f32 v{V_L+qt}, v{V_L+qt}, v{b+r}")
        d=V_P+(j&1)*32+(u*4+qt)*4+(kt&1)*2
        C.append(f"v_cvt_pk_bf16_f32 v{d}, v{b}, v{b+1}"); C.append(f"v_cvt_pk_bf16_f32 v{d+1}, v{b+2}, v{b+3}")
    return X,A,C

def segment(mf, sm, lds, dma, pre=(), early_lds=False):
    if mf is None and sm:
        X,A,C=sm
        out=[t.replace('S_','s_',1) if t.startswith('S_') else t for t in pre]+list(lds)
        for g in dma: out+=g
        return out+X+A+C
    G=Gaps(mf)
    for t in pre: G.put(0,t)
    if sm:
        X,A,C=sm
        for k in range(16):
            G.put(2*k,X[k]); G.put(2*k+1,A[k])
            if k&1: G.put(2*k+1,C[k>>1])
        base=[4*k+1 for k in range(8)]
        over=[3,11,19,27,7,23,15,31]
        if early_lds: base=base[:7]; over=[3,11,19,15,7,23]
        slots=sorted(base+over[:max(0,len(lds)-len(base))])[:len(lds)] if len(lds)>len(base) else base[:len(lds)]
        dg=[7,23,15,31,3,11,19,27]
        if early_lds: dg=[27,29,31,23]
        dg=sorted(dg[:len(dma)])
    else:
        slots=[2*k for k in range(16)][:len(lds)]
        dg=[2*k+1 for k in range(16)][:len(dma)]
    assert len(slots)==len(lds) and len(dg)==len(dma)
    for g,t in zip(slots,lds): G.put(g,t)
    for g,grp in zip(dg,dma): G.group(g,grp)
    return G.emit()

NT=32
def period(j, X=None):
    X=X or {}
    out=[]
    hasK = j<NT; hasV = 0<=j-1<NT
    D = (kv_dma('K',j+3) if j+3<NT+1 else [])+(kv_dma('V',j+2) if j+2<NT else [])
    D = [D[0:2],D[2:4],D[4:6],D[6:8]]
    if j==0: D=[[],[],D[0]+D[1],D[2]+D[3]]
    for k,sg in enumerate("ABCD"): D[k]=D[k]+X.get(sg,[])
    KR0=kreads(j,(0,1)) if hasK else []; KR1=kreads(j,(2,3)) if hasK else []
    V=vreads(j-1,range(8)) if hasV else []
    pre=fine_pre()+[f"WAITTOK lgkmcnt(0) @K{j},V{j-1}"+(",pub" if j==1 else ""),"s_barrier"]+fine_post() if (j>=1 and (hasK or hasV)) else []
    if j>=1:
        out+=segment(pv(j-2,range(4,8)) if j-2>=0 else None, softmax(j-1,2) if j-1<NT else None, KR0+V[0:4], D[0], pre)
        out+=X.get('mid',[])
        if j-1<NT:
            out+=segment(qk(0) if hasK else None, softmax(j-1,3), KR1+V[4:8]+([] if hasK else V[8:16]), D[1])
    if j<NT:
        out+=segment(qk(1), softmax(j,0), V[8:20], D[2])
        out+=segment(pv(j-1,range(4),zero=(j==1)) if j>=1 else None, softmax(j,1), V[20:32], D[3], early_lds=OPT['earlylds'])
    elif j==NT:
        out+=segment(pv(j-1,range(4)), None, V[16:32], D[3])
    return out

def att_start(p):
    p.e("WAITTOK @K0\ns_barrier")
    for t in kreads(0,(0,1,2,3)): p.e(t)
    for t in qk(0,zero=True): p.e(t)
    for qt in range(4):
        a=V_S+qt*4; b=V_S+(4+qt)*4; m=V_NM+qt*4
        p.e(f"v_max3_f32 v{m}, v{a}, v{a+1}, v{a+2}\nv_max3_f32 v{m+1}, v{a+3}, v{b}, v{b+1}\nv_max3_f32 v{m}, v{m}, v{b+2}, v{b+3}\nv_max_f32 v{m}, v{m}, v{m+1}")
        p.e(f"v_mov_b32 v{m+1}, v{m}\nv_permlane16_swap_b32 v{m}, v{m+1}\nv_max_f32 v{m}, v{m}, v{m+1}")
        p.e(f"v_mov_b32 v{m+1}, v{m}\nv_permlane32_swap_b32 v{m}, v{m+1}\nv_max_f32 v{m}, v{m}, v{m+1}")
        p.e(f"v_sub_f32 v{m}, 0, v{m}\nv_mov_b32 v{m+1}, v{m}\nv_mov_b32 v{m+2}, v{m}\nv_mov_b32 v{m+3}, v{m}")
        for r in range(4): p.e(f"v_add_f32 v{a+r}, v{a+r}, v{m}\nv_add_f32 v{b+r}, v{b+r}, v{m}")

S_CA, S_CW, S_XI, S_OUT = 8, 12, 16, 24
S_AO=40; S_WO=41; S_AD=42; S_WD=43; S_LA=45; S_LW=55; S_SPIN=54
def spin(label, srd_, soff, expect, va=V_PADDR):
    o=[(f"s_mov_b32 s{S_SPIN}, 0x100000",None),(f"v_mov_b32 v{V_POLL}, v{V_POLL}",None),(f"{label}:",None),
       (f"v_cmp_gt_u32 vcc, {expect}, v{V_POLL}",None),(f"s_cbranch_vccz {label}_ok",None),
       ("s_sleep 2",'slow'),(f"buffer_load_dword v{V_POLL}, v{va}, {sr(srd_)}, {soff} offen sc1",'slow'),
       (f"s_sub_u32 s{S_SPIN}, s{S_SPIN}, 1",'slow'),(f"s_cmp_lg_u32 s{S_SPIN}, 0",'slow'),("s_waitcnt vmcnt(0)",'slow'),(f"s_cbranch_scc1 {label}",'slow'),
       (f"{label}_ok:",None)]
    return [I(t,g) for t,g in o]

def c_setup(p):
    p.e(f"s_mul_i32 s{S_T0}, s{S_RT}, {AF_RT}\ns_add_u32 s{S_T0}, s{S_T0}, {WS_AF}")
    srd_off(p, S_CA, 68, f"s{S_T0}", NSTEP*4096)
    p.e(f"s_mul_i32 s{S_T0}, s{S_CT}, {WF_CT}\ns_add_u32 s{S_T0}, s{S_T0}, {WS_WF}")
    srd_off(p, S_CW, 68, f"s{S_T0}", NSTEP*5120)
    srd(p, S_XI, "s92", "s93", 2048*1280)
    p.e(f"s_lshl_b32 s{S_AO}, s{S_WAVE}, 17\ns_mul_i32 s{S_WO}, s{S_WAVE}, {32*5120}")
    p.e(f"s_mul_i32 s{S_T0}, s{S_WAVE}, 14\ns_add_u32 s{S_T0}, s{S_T0}, 128\ns_lshl_b32 s{S_AD}, s{S_T0}, 12\ns_mul_i32 s{S_WD}, s{S_T0}, 5120")
    p.e(f"v_and_b32 v{V_PADDR}, 7, v{V_LANE}\nv_lshlrev_b32 v{V_PADDR}, 5, v{V_PADDR}")
    if OPT['rotC']:
        p.e(f"s_lshl_b32 s{S_RO}, s{S_CT}, 1\ns_add_u32 s{S_RO}, s{S_RO}, s{S_RT}\ns_and_b32 s{S_RO}, s{S_RO}, 7\ns_mul_i32 s{S_RA}, s{S_RO}, 7\ns_lshr_b32 s{S_RA}, s{S_RA}, 2")
    else: p.e(f"s_mov_b32 s{S_RO}, 0\ns_mov_b32 s{S_RA}, 0")

PRE_STRIPES={('A',0):16384, ('W',0):65536, ('A',1):131072, ('W',1):131072+16384, ('A',2):32768, ('W',2):65536+16384}
class CState:
    def __init__(self):
        self.free=[]; self.A={}; self.W={}
    def off(self,t,dst,bd,bo,stride):
        if t<14:
            return [f"s_add_u32 s{dst}, s{S_RA}, {t}", f"s_sub_u32 s{S_T2}, s{dst}, 14", f"s_cmp_ge_u32 s{dst}, 14", f"s_cselect_b32 s{dst}, s{S_T2}, s{dst}",
                    f"s_mul_i32 s{dst}, s{dst}, {stride}", f"s_add_u32 s{dst}, s{dst}, s{bd}"]
        u=t-14
        return [f"s_add_u32 s{dst}, s{S_RO}, {u&7}", f"s_and_b32 s{dst}, s{dst}, 7", f"s_add_u32 s{dst}, s{dst}, {u&~7}",
                f"s_mul_i32 s{dst}, s{dst}, {stride}", f"s_add_u32 s{dst}, s{dst}, s{bo}"]
    def offA(self,t): return self.off(t,S_LA,S_AD,S_AO,4096)
    def offW(self,t): return self.off(t,S_LW,S_WD,S_WO,5120)
    def loadA(self, t):
        fr=[self.free.pop(0) for _ in range(4)]; self.A[t]=fr
        G=[[f"buffer_load_dwordx4 {fr[i]}, v{V_C16}, {sr(S_CA)}, s{S_LA} offen offset:{i*1024} sc1"] for i in range(4)]
        G[0]=self.offA(t)+G[0]; return G
    def loadW(self, t, only5=False):
        if only5:
            fr=[None]*4+[self.free.pop(0)]; G=[]
        else:
            fr=[self.free.pop(0) for _ in range(5)]
            G=[[f"buffer_load_dwordx4 {fr[i]}, v{V_C16}, {sr(S_CW)}, s{S_LW} offen offset:{i*1024} sc1"] for i in range(4)]
        self.W[t]=fr
        G+=[[f"buffer_load_dwordx4 {fr[4]}, v{V_C16B}, {sr(S_CW)}, s{S_LW} offen sc1"]]
        G[0]=self.offW(t)+G[0]; return G
    def pre_dma(self, kind, t):
        srd_,so,off = (S_CA,S_LA,self.offA(t)) if kind=='A' else (S_CW,S_LW,self.offW(t))
        G=[[f"buffer_load_dwordx4 v{V_C16}, {sr(srd_)}, s{so} offen offset:{i*1024} sc1 lds @p{kind}{t}"] for i in range(4)]
        G[0]=[f"s_add_u32 m0, s{S_MW}, {PRE_STRIPES[(kind,t)]}"]+off+G[0]
        return G
    def pre_read(self, t, va):
        o=[f"WAITTOK @pA{t},pW{t}"]
        self.A[t]=[self.free.pop(0) for _ in range(4)]
        for i in range(4): self.W[t][i]=self.free.pop(0)
        for kind,fr in (('W',self.W[t]),('A',self.A[t])):
            b=PRE_STRIPES[(kind,t)]
            for i in range(4): o.append(f"ds_read_b128 {fr[i]}, v{va[b>>16]} offset:{(b&65535)+i*1024}")
        return o
    def step(self, t):
        ab = 128 if t<14 else 0
        M=[]
        for n in range(5):
            for q in range(4):
                d=r4('a',ab+(q*5+n)*4)
                M.append(f"{MF} {d}, {self.W[t][n]}, {self.A[t][q]}, {'0' if t in (0,14) else d}")
        self.free += self.A.pop(t)+self.W.pop(t)
        return M

def o_frag(k):
    c,qt=k>>2,k&3
    o=[]; tb=200; d=212+(k%3)*4
    for h in range(2):
        a=((2*c+h)*4+qt)*4
        for r in range(4): o.append(f"v_accvgpr_read_b32 v{tb+h*4+r}, a{a+r}")
    rl=V_NM+2*qt
    for z in range(4): o.append(f"v_pk_mul_f32 v[{tb+2*z}:{tb+2*z+1}], v[{tb+2*z}:{tb+2*z+1}], v[{rl}:{rl+1}]")
    for z in range(4): o.append(f"v_cvt_pk_bf16_f32 v{d+z}, v{tb+2*z}, v{tb+2*z+1}")
    if qt==0: o+= [f"s_lshl_b32 s{S_T0}, s{S_HEAD}, 14", f"s_add_u32 s{S_T0}, s{S_T0}, {c*4096}"]
    o.append(f"buffer_store_dwordx4 {r4('v',d)}, v{V_C16}, {sr(S_AF)}, s{S_T0} offen offset:{qt*1024} sc1 @ost")
    return o

def l2pf_groups():
    G=[]
    G.append([f"s_and_b32 s{S_T0}, s{S_CT}, 3", f"s_mul_i32 s{S_T0}, s{S_T0}, 7", f"s_add_u32 s{S_T0}, s{S_T0}, s{S_WAVE}", f"s_lshl_b32 s{S_T0}, s{S_T0}, 13", f"s_add_u32 s{S_T0}, s{S_T0}, {128*4096}",
              f"buffer_load_dword v{V_PF}, v{V_PADDR}, {sr(S_CA)}, s{S_T0} offen sc1 @pf"])
    G.append([f"s_add_u32 s{S_T0}, s{S_T0}, 32768", f"buffer_load_dword v{V_PF}, v{V_PADDR}, {sr(S_CA)}, s{S_T0} offen sc1 @pf"])
    G.append([f"s_and_b32 s{S_T1}, s{S_RT}, 7", f"s_lshl_b32 s{S_T1}, s{S_T1}, 2", f"s_add_u32 s{S_T1}, s{S_T1}, s{S_WAVE}", f"s_lshl_b32 s{S_T1}, s{S_T1}, 13", f"s_add_u32 s{S_T0}, s{S_T1}, {80*8192+16384}",
              f"buffer_load_dword v{V_PF}, v{V_PADDR}, {sr(S_CW)}, s{S_T0} offen sc1 @pf"])
    G.append([f"s_and_b32 s{S_T1}, s{S_RT}, 7", f"s_lshl_b32 s{S_T1}, s{S_T1}, 13", f"s_add_u32 s{S_T0}, s{S_T1}, s{S_WO}",
              f"buffer_load_dword v{V_PF}, v{V_PADDR}, {sr(S_CW)}, s{S_T0} offen sc1 @pf"])
    return G

def attention_and_c(p):
    LA,FPS,DRAIN=OPT['LA'],OPT['FPS'],OPT['DRAIN']
    C=CState()
    c_setup(p)
    att_start(p)
    stamp(p,4)
    p.ext(period(0)); p.ext(period(1,{'mid':arrive("K1_arrA",0)}))
    for j in range(2,30):
        for t in period(j): p.e(t, tag=f"per{j}")
    X={'A':[[f"buffer_load_dword v{V_POLL}, v{V_PADDR}, {sr(S_DBG)}, 0 offen sc1"]],
       'mid':spin("K1_spinA",S_DBG,"0",32)+[f"v_lshlrev_b32 v{V_PADDR}, 7, v{V_LANE}"]}
    npre=3 if OPT['ldspre'] else 0
    if npre:
        X['B']=C.pre_dma('W',0); X['C']=C.pre_dma('A',0); X['D']=C.pre_dma('W',1)
    if OPT['l2pfC']: X['D']=l2pf_groups()
    p.ext(period(30,X))
    X={}
    if npre:
        Z=C.pre_dma('A',1)+C.pre_dma('W',2)+C.pre_dma('A',2)
        X={'A':Z[0:3],'B':Z[3:6],'C':Z[6:9],'D':Z[9:12]}
    p.ext(period(31,X))
    C.free=[r4('v',b) for b in range(232,252 if OPT['stamps'] else 256,4)]+([r4('v',64)] if OPT['stamps'] else [])+[r4('v',b) for b in range(128,192,4)]+[r4('v',b) for b in range(0,32,4)]
    E=[]
    nw=na=npre
    for t in range(npre): E+=C.loadW(t,only5=True)
    if OPT['early']:
        for t in range(npre,npre+3): E+=C.loadW(t)+C.loadA(t)
        nw=na=npre+3
    p.ext(period(32,{'D':E[:16]}))
    p.ext(period(33,{'A':E[16:]}))
    stamp(p,5)
    C.free+=[r4('v',b) for b in range(32,128,4) if not (OPT['stamps'] and b==64)]+[r4('a',b) for b in range(208,256,4)]
    p.e(f"v_add_u32 v224, s{S_MW}, v{V_C16}\nv_add_u32 v225, 0x10000, v224\nv_add_u32 v{V_PF}, 0x20000, v224")
    va={0:224,1:225,2:V_PF}
    if npre:
        if OPT['l2pfC']:
            p.e("WAITTOK @pf")
            p.L.insert(len(p.L)-4, p.L.pop())
        for t in C.pre_read(0,va): p.e(t)
    while na<npre+LA and len(C.free)>=9+16:
        flat(p,C.loadW(nw)+C.loadA(na)); nw+=1; na+=1
    for qt in range(4):
        l=V_L+qt; T=200
        p.e(f"v_mov_b32 v{T}, v{l}\nv_permlane16_swap_b32 v{l}, v{T}\nv_add_f32 v{l}, v{l}, v{T}")
        p.e(f"v_mov_b32 v{T}, v{l}\nv_permlane32_swap_b32 v{l}, v{T}\nv_add_f32 v{l}, v{l}, v{T}")
        p.e(f"v_rcp_f32 v{V_NM+2*qt}, v{l}")
        p.e(f"v_mov_b32 v{V_NM+2*qt+1}, v{V_NM+2*qt}")
    p.e(f"v_and_b32 v{V_PADDR}, 31, v{V_LANE}\nv_lshlrev_b32 v{V_PADDR}, 2, v{V_PADDR}\ns_lshl_b32 s{S_T1}, s{S_RT}, 7")
    kf=0
    for t in range(46):
        if t+1<npre:
            for x in C.pre_read(t+1,va): p.e(x)
        while kf<16 and kf<(t+1)*FPS:
            for x in o_frag(kf): p.e(x)
            kf+=1
            if kf==16: C.free += [r4('a',b) for b in range(80,128,4)]
        if t==DRAIN:
            assert kf==16
            p.e(f"WAITTOK @ost\nv_mov_b32 v200, 0\nv_mov_b32 v201, 1\ns_mov_b64 exec, 1\nbuffer_store_dword v201, v200, {sr(S_FL)}, s{S_FOFF} offen sc1\ns_mov_b64 exec, -1")
            stamp(p,6)
        if t==14:
            p.e("s_barrier")
            p.e(f"s_mul_i32 s{S_T0}, s{S_WAVE}, 5120\nv_add_u32 v200, s{S_T0}, v{V_C16}\nv_add_u32 v201, 0x14000, v200\nv_add_u32 v205, 40960, v200\nv_add_u32 v206, 40960, v201")
            p.ext(spin("K1_spinO",S_FL,f"s{S_T1}",1))
            stamp(p,7)
            while na<14+LA:
                flat(p,C.loadA(na)); na+=1
            for q in range(4):
                for n in range(5):
                    p.e(f"ds_write_b128 v{201 if q<2 else 206}, {r4('a',128+(q*5+n)*4)} offset:{(q&1)*20480+n*1024}")
            p.e(f"s_lshl_b32 s{S_T0}, s{S_RT}, 6\ns_lshl_b32 s{S_T1}, s{S_WAVE}, 4\ns_add_u32 s{S_T0}, s{S_T0}, s{S_T1}")
            p.e(f"v_and_b32 v202, 15, v{V_LANE}\nv_add_u32 v202, s{S_T0}, v202\nv_mul_u32_u24 v202, 1280, v202")
            p.e(f"v_lshrrev_b32 v203, 4, v{V_LANE}\nv_mul_u32_u24 v203, 40, v203\nv_add_u32 v202, v202, v203\ns_mul_i32 s{S_T1}, s{S_CT}, 160\nv_add_u32 v202, s{S_T1}, v202")
            for n in range(5): p.e(f"buffer_load_dwordx2 v[{212+2*n}:{213+2*n}], v202, {sr(S_XI)}, 0 offen offset:{8*n}")
            srd(p, S_OUT, "s94", "s95", 2048*1280)
            p.e(f"s_mul_i32 s{S_T0}, s{S_WAVE}, 20480\nv_add_u32 v203, s{S_T0}, v{V_C16}\nv_add_u32 v204, 0x14000, v203")
        if t==16:
            p.e("s_waitcnt lgkmcnt(0)\ns_barrier")
            for n in range(5):
                for src in range(4): p.e(f"ds_read_b128 {r4('a',128+(n*4+src)*4)}, v204 offset:{src*5120+n*1024}")
        if 17<=t<22:
            n=t-17
            for r in range(4):
                for src in range(4): p.e(f"v_accvgpr_read_b32 v{192+src}, a{128+(n*4+src)*4+r}")
                p.e("v_add_f32 v192, v192, v193\nv_add_f32 v194, v194, v195\nv_add_f32 v192, v192, v194")
                p.e(f"v_mul_f32 v193, 0x{f2u(-math.log2(math.e)):08x}, v192\nv_exp_f32 v193, v193\nv_add_f32 v193, 1.0, v193\nv_rcp_f32 v193, v193\nv_mul_f32 v192, v192, v193")
                p.e(f"v_accvgpr_write_b32 a{128+n*16+r}, v192")
        for x in C.step(t): p.e(x)
        if t==12: p.e(f"buffer_load_dword v{V_POLL}, v{V_PADDR}, {sr(S_FL)}, s{S_T1} offen sc1")
        if t>=14:
            if nw<46: flat(p,C.loadW(nw)); nw+=1
            if na<46: flat(p,C.loadA(na)); na+=1
        else:
            budget=9
            while budget>0:
                if na<14 and len(C.free)>=9+(8 if t+2<npre else 0):
                    flat(p,C.loadW(nw)+C.loadA(na)); nw+=1; na+=1; budget-=9
                elif na>=14 and len(C.free)>=5+4*LA:
                    flat(p,C.loadW(nw)); nw+=1; budget-=5
                else: break
    stamp(p,8)
    for q in range(4):
        for n in range(5):
            p.e(f"ds_write_b128 v{200 if q<2 else 205}, {r4('a',(q*5+n)*4)} offset:{(q&1)*20480+n*1024}")
    for i in range(10): p.e(f"v_lshlrev_b32 v{100+2*i}, 16, v{212+i}\nv_and_b32 v{101+2*i}, 0xffff0000, v{212+i}")
    for n in range(5):
        for r in range(4): p.e(f"v_accvgpr_read_b32 v{120+n*4+r}, a{128+n*16+r}")
    p.e("s_waitcnt lgkmcnt(0)\ns_barrier")
    for n in range(5):
        for src in range(4): p.e(f"ds_read_b128 {r4('v',(n*4+src)*4)}, v203 offset:{src*5120+n*1024}")
    for n in range(5):
        b=n*16
        for z in (0,2):
            p.e(f"v_pk_add_f32 v[{b+z}:{b+z+1}], v[{b+z}:{b+z+1}], v[{b+4+z}:{b+5+z}]\nv_pk_add_f32 v[{b+8+z}:{b+9+z}], v[{b+8+z}:{b+9+z}], v[{b+12+z}:{b+13+z}]")
            p.e(f"v_pk_add_f32 v[{b+z}:{b+z+1}], v[{b+z}:{b+z+1}], v[{b+8+z}:{b+9+z}]")
            p.e(f"v_pk_fma_f32 v[{100+n*4+z}:{101+n*4+z}], v[{b+z}:{b+z+1}], v[{120+n*4+z}:{121+n*4+z}], v[{100+n*4+z}:{101+n*4+z}]")
            p.e(f"v_cvt_pk_bf16_f32 v{140+n*2+z//2}, v{100+n*4+z}, v{101+n*4+z}")
        p.e(f"buffer_store_dwordx2 v[{140+2*n}:{141+2*n}], v202, {sr(S_OUT)}, 0 offen offset:{8*n}")

def rollup(L, tags_first, label):
    reps=[[i for i in L if i.tag in tg] for tg in tags_first]
    t0=[i.text for i in reps[0]]
    for r in reps[1:]:
        assert [i.text for i in r]==t0, f"loop bodies differ {label}"
    alltags=set(t for tg in tags_first for t in tg)
    first=next(k for k,i in enumerate(L) if i.tag in alltags)
    last=max(k for k,i in enumerate(L) if i.tag in alltags)
    assert all(i.tag in alltags for i in L[first:last+1])
    body=list(reps[0])
    mk=[k for k,i in enumerate(body) if i.kind=='mfma']
    body.insert(mk[-1]+1, I(f"s_cmp_lg_u32 s{S_CNT}, 0"))
    body.insert(mk[-2]+1, I(f"s_sub_u32 s{S_CNT}, s{S_CNT}, 1"))
    assert not any(i.kind=='salu' for i in body[mk[-1]+3:]), [i.text for i in body[mk[-1]:]]
    body.append(I(f"s_cbranch_scc1 {label}"))
    return L[:first]+[I(f"s_mov_b32 s{S_CNT}, {len(reps)}"),I(f".p2align {OPT['align']}"),I(f"{label}:")]+body+L[last+1:]

def k1():
    p=Prog()
    setup(p); stamp(p,0); prologue(p); stamp(p,2); pro_epilogue(p); stamp(p,3); attention_and_c(p); stamp_out(p,10)
    p.e("K1_end:\ns_endpgm")
    rep=[]
    L=finish(p.L, report=rep)
    for r in rep:
        if r[3] and r[3]!='slow': print("; pad in", r, file=sys.stderr)
    L=rollup(L, [[f"per{j+k}" for k in range(4)] for j in range(2,30,4)], "K1_att")
    return L

HDR = open("recurrent_scan__mha_block_cached__glu_gated_reglu__prompt.s.ref").read().split("; Override launch")[0]
KN="recurrent_scan__mha_block_cached__glu_gated_reglu__prompt_kernel"
def main():
    s = HDR
    s += "; @launch grid=(256,1,1) block=(256,1,1) lds=163840\n"
    s += '.amdgcn_target "amdgcn-amd-amdhsa--gfx950"\n.text\n'
    s += head(KN)+text(k1())
    s += ".p2align 8\n.fill 2048, 4, 0xbf800000\n"
    s += kd(KN,512,256)
    return s
if __name__=="__main__":
    for a in sys.argv[2:]:
        k,v=a.split("="); OPT[k]=eval(v)
    open(sys.argv[1],"w").write(main())
```

```python
from gen import *
import gen
MF = "v_mfma_f32_16x16x32_bf16"
OPT = dict(fast0=True, gap0=3, pfrows=64, pfrow0=64, grp=8, rlgap=3, dbgst=False, rot=False, rotC=True, dmagap=7, fine=False, align=6, earlylds=False, stamps=False, pf=True, codepf=True, LA=5, FPS=2, DRAIN=10, l2pfC=False, ldspre=True, early=True)
WS_FL=60<<20
WS_ST=61<<20
LDS_RL=131072
LDS_CS=131072+6144
S_DBG, S_X, S_WQ, S_WG, S_FL, S_K, S_V, S_AF = 4, 8, 12, 16, 20, 24, 28, 32
S_WAVE=36; S_HEAD=37; S_QB=38; S_SIG=39
S_XOFF=40; S_WQOFF=41; S_WGOFF=42
S_MX=43; S_MW=44
S_KOFF=46; S_VOFF=47; S_CNT=50; S_T0=51; S_T1=52; S_FOFF=53; S_SCALE=54
S_KX=56; S_KW=57; S_RA=58; S_RO=59
S_RT=70; S_CT=71; S_HL=48; S_T2=49
V_S=0; V_P=64; V_Q=128; V_NM=192; V_L=208; V_KA=212; V_VA=216; V_KD=224; V_VD=225; V_LANE=226
V_C16=227; V_C16B=228; V_POLL=229; V_PADDR=230; V_PF=231
V_XD=232; V_WQD=240; V_WGD=244; V_WQA=128; V_WQA2=132; V_WGA=136; V_WGA2=144; V_RL=152; V_CS=192; V_XA=208; V_ONES=248; V_RLA=210; V_RLW=211; V_ST=232; V_CSA=240
S_RS=72; S_RD=76; S_STT=80
S_RO0=84; S_RO1=85
A_K=128; A_V=192
def r4(f,b): return f"{f}[{b}:{b+3}]"
def sr(s): return f"s[{s}:{s+3}]"

def stamp(p,i):
    if OPT['stamps']: p.e(f"s_memtime s[98:99]\ns_memrealtime s[100:101]\ns_waitcnt lgkmcnt(0)\nv_writelane_b32 v254, s98, {2*i}\nv_writelane_b32 v254, s100, {2*i+1}")
def stamp_out(p,n):
    if not OPT['stamps']: return
    p.e("s_waitcnt vmcnt(0) lgkmcnt(0)")
    stamp(p,n-1)
    srd_off(p, 8, 68, 64<<20, 1<<20)
    p.e(f"s_lshl_b32 s3, s2, 2\ns_add_u32 s3, s3, s{S_WAVE}\ns_lshl_b32 s3, s3, 7\nv_mov_b32 v0, s3")
    p.e(f"v_lshlrev_b32 v1, 2, v{V_LANE}\ns_mov_b64 exec, 0xffffffff\nbuffer_store_dword v254, v1, s[8:11], s3 offen\ns_mov_b64 exec, -1")
    if OPT['fine']:
        p.e(f"s_lshl_b32 s3, s3, 1\ns_add_u32 s3, s3, 0x40000\nv_lshlrev_b32 v1, 2, v{V_LANE}\nbuffer_store_dword v{V_FS}, v1, s[8:11], s3 offen")

V_FS=255; S_FI=96
def fine_pre():  return ["s_memtime s[98:99]"] if OPT['fine'] else []
def fine_post(): return [f"v_writelane_b32 v{V_FS}, s98, m0_FI", ] if False else ([f"s_mov_b32 s97, m0", f"s_mov_b32 m0, s{S_FI}", f"v_writelane_b32 v{V_FS}, s98, m0", f"S_mov_b32 m0, s97", f"S_add_u32 s{S_FI}, s{S_FI}, 1"] if OPT['fine'] else [])
class Gaps:
    def __init__(self, mf): self.mf=mf; self.f={}
    def put(self, g, t, post=False): self.f.setdefault(g,[]).append((t,post))
    def group(self, g, grp):
        k=next(i for i,t in enumerate(grp) if not t.startswith('s_'))
        for t in grp[:k]: self.put(max(g-1,0), t)
        self.put(g, grp[k])
        for t in grp[k+1:]: self.put(g+1, t)
    def emit(self):
        def key(x):
            t=x[0]
            if t.startswith(('s_','WAITTOK')): return 0
            if t.startswith('v_writelane'): return 0.3
            if t.startswith('S_'): return 0.6
            return 1 if t.startswith(('ds_','buffer_','global_')) else 2
        out=[]
        n=len(self.mf)
        for g in range(max([n]+[k+1 for k in self.f])):
            if g<n and self.mf[g]: out.append(self.mf[g])
            out += [x[0].replace('S_','s_',1) if x[0].startswith('S_') else x[0] for x in sorted(self.f.get(g,[]), key=key)]
        return out

def setup(p):
    p.e("s_cmp_ge_u32 s2, 256\ns_cbranch_scc1 K1_end")
    p.e("s_load_dwordx4 s[24:27], s[0:1], 8\ns_load_dwordx2 s[60:61], s[0:1], 24\ns_load_dwordx4 s[64:67], s[0:1], 48")
    p.e("s_load_dwordx2 s[68:69], s[0:1], 88\ns_load_dwordx2 s[62:63], s[0:1], 80\ns_load_dwordx2 s[92:93], s[0:1], 0\ns_load_dwordx2 s[94:95], s[0:1], 72")
    p.e("s_load_dwordx2 s[86:87], s[0:1], 32\ns_load_dwordx2 s[88:89], s[0:1], 64")
    if OPT['codepf']:
        p.e(f"s_getpc_b64 s[6:7]\ns_lshr_b32 s{S_T0}, s2, 3\ns_mul_i32 s{S_T0}, s{S_T0}, {18*128}")
        p.e(f"v_min_u32 v52, 17, v0\nv_lshlrev_b32 v52, 7, v52\nv_add_u32 v52, s{S_T0}, v52")
        p.e(f"global_load_dword v{V_PF}, v52, s[6:7] @pf")
    p.e(f"v_and_b32 v{V_LANE}, 63, v0\nv_lshrrev_b32 v1, 6, v0")
    p.e(f"v_readfirstlane_b32 s{S_WAVE}, v1")
    p.e(f"s_and_b32 s3, s2, 7\ns_lshr_b32 s4, s2, 3\ns_and_b32 s{S_HL}, s4, 3\ns_lshr_b32 s{S_QB}, s4, 2")
    p.e(f"s_lshl_b32 s{S_HEAD}, s3, 2\ns_add_u32 s{S_HEAD}, s{S_HEAD}, s{S_HL}")
    p.e(f"s_lshl_b32 s{S_SIG}, s{S_HL}, 3\ns_add_u32 s{S_SIG}, s{S_SIG}, s3")
    p.e(f"s_lshr_b32 s{S_RT}, s4, 2\ns_lshr_b32 s6, s3, 1\ns_lshl_b32 s6, s6, 3\ns_add_u32 s{S_RT}, s{S_RT}, s6")
    p.e(f"s_and_b32 s{S_CT}, s4, 3\ns_and_b32 s6, s3, 1\ns_lshl_b32 s6, s6, 2\ns_add_u32 s{S_CT}, s{S_CT}, s6")
    L=V_LANE
    p.e(f"v_lshrrev_b32 v1, 4, v{L}\nv_bfe_u32 v2, v{L}, 2, 2\nv_and_b32 v3, 3, v{L}\nv_and_b32 v4, 15, v{L}\nv_lshrrev_b32 v5, 3, v{L}\nv_and_b32 v6, 7, v{L}")
    p.e(f"s_lshl_b32 s6, s{S_WAVE}, 6\nv_add_u32 v7, s6, v5\nv_mul_u32_u24 v7, 1280, v7")
    p.e("v_xor_b32 v8, v6, v1\nv_xor_b32 v9, 4, v8\nv_lshl_add_u32 v8, v8, 4, v7\nv_lshl_add_u32 v9, v9, 4, v7")
    for i in range(8): p.e(f"v_add_u32 v{V_XD+i}, {i*10240-1024*(i&3)}, v{8+(i&1)}")
    p.e(f"s_lshl_b32 s6, s{S_WAVE}, 4\nv_add_u32 v7, s6, v1\nv_lshlrev_b32 v7, 13, v7")
    p.e("v_lshlrev_b32 v8, 2, v1\nv_xor_b32 v8, v4, v8\nv_lshl_add_u32 v8, v8, 4, v7")
    for i in range(4): p.e(f"v_add_u32 v{V_WQD+i}, {i*(32768-1024)}, v8")
    p.e(f"s_and_b32 s6, s{S_WAVE}, 1\ns_lshl_b32 s6, s6, 5\nv_add_u32 v7, s6, v5\nv_mul_u32_u24 v7, 3456, v7")
    p.e("v_and_b32 v8, 2, v5\nv_xor_b32 v8, v6, v8\nv_xor_b32 v9, 4, v8\nv_lshl_add_u32 v8, v8, 4, v7\nv_lshl_add_u32 v9, v9, 4, v7")
    for i in range(4): p.e(f"v_add_u32 v{V_WGD+i}, {i*(8*3456-1024)}, v{8+(i&1)}")
    if OPT['rot']:
        p.e(f"s_mul_i32 s6, s{S_HL}, 5\ns_add_u32 s6, s6, 1\ns_lshr_b32 s6, s6, 1\ns_add_u32 s6, s6, s{S_QB}\ns_add_u32 s6, s6, s3")
        for z in range(2): p.e("s_sub_u32 s7, s6, 10\ns_cmp_ge_u32 s6, 10\ns_cselect_b32 s6, s7, s6")
        p.e(f"s_mov_b32 s{S_KX}, s6\ns_mov_b32 s{S_KW}, s6")
    else: p.e(f"s_mov_b32 s{S_KX}, 0\ns_mov_b32 s{S_KW}, 0")
    p.e(f"s_lshl_b32 s{S_MX}, s{S_WAVE}, 13\ns_lshl_b32 s{S_MW}, s{S_WAVE}, 12")
    p.e("s_waitcnt lgkmcnt(0)")
    p.e(f"s_mul_i32 s6, s{S_QB}, {256*1280}")
    srd_off(p, S_X, 92, "s6", 256*1280)
    p.e(f"s_lshl_b32 s7, s{S_HEAD}, 2\ns_add_u32 s7, s7, s{S_WAVE}\ns_lshl_b32 s7, s7, 1")
    p.e(f"v_lshrrev_b32 v48, 5, v{V_LANE}\nv_add_u32 v48, s7, v48\nv_mul_u32_u24 v49, 1280, v48\nv_and_b32 v50, 31, v{V_LANE}\nv_lshl_add_u32 v49, v50, 3, v49")
    for i in range(5): p.e(f"buffer_load_dwordx2 v[{10+2*i}:{11+2*i}], v49, {sr(S_X)}, 0 offen offset:{256*i}")
    p.e(f"s_lshl_b32 s6, s{S_HEAD}, 8")
    srd_off(p, S_WQ, 60, "s6", 0)
    p.e(f"s_sub_u32 s{S_WQ+2}, {640*8192}, s6")
    p.e(f"s_cmp_lt_u32 s{S_WAVE}, 2\ns_cselect_b32 s52, s64, s66\ns_cselect_b32 s53, s65, s67")
    p.e(f"s_lshl_b32 s6, s{S_SIG}, 7")
    srd_off(p, S_WG, 52, "s6", 0)
    p.e(f"s_sub_u32 s7, {640*3456}, s6\ns_cmp_lt_u32 s{S_SIG}, 27\ns_cselect_b32 s{S_WG+2}, s7, 0")

def setup2(p):
    p.e(f"s_lshl_b32 s6, s{S_HEAD}, 19")
    srd_off(p, S_V, 26, "s6", 524288)
    srd_off(p, S_K, 24, "s6", 524288)
    p.e(f"s_lshl_b32 s6, s{S_QB}, 2\ns_add_u32 s6, s6, s{S_WAVE}\ns_mul_i32 s6, s6, {AF_RT}\ns_add_u32 s6, s6, {WS_AF}")
    srd_off(p, S_AF, 68, "s6", NSTEP*4096)
    srd_off(p, S_FL, 68, WS_FL, 4096)
    p.e(f"s_mov_b32 s{S_KOFF}, 0\ns_mov_b32 s{S_VOFF}, 0")
    p.e("v_lshl_add_u32 v7, v1, 3, v2\nv_lshlrev_b32 v8, 8, v7\nv_lshl_add_u32 v8, v3, 4, v8\nv_add_u32 v8, 0x10000, v8")
    p.e(f"v_xor_b32 v51, s{S_WAVE}, v2")
    for c in range(4): p.e(f"v_xor_b32 v9, {c}, v51\nv_lshl_add_u32 v{V_WQA+c}, v9, 6, v8\nv_add_u32 v{V_WQA2+c}, 0x10000, v{V_WQA+c}")
    p.e("v_lshlrev_b32 v8, 7, v7\nv_lshl_add_u32 v8, v3, 3, v8\nv_add_u32 v8, 0x14000, v8")
    p.e(f"v_lshrrev_b32 v9, 1, v2\nv_xor_b32 v51, s{S_WAVE}, v1\nv_and_b32 v51, 1, v51\nv_lshl_add_u32 v51, v51, 1, v9")
    p.e(f"s_lshr_b32 s6, s{S_WAVE}, 1\ns_lshl_b32 s6, s6, 13\nv_add_u32 v8, s6, v8")
    for t in range(4):
        p.e(f"v_xor_b32 v9, {t}, v51\nv_lshl_add_u32 v{V_WGA+t}, v9, 5, v8\nv_xor_b32 v{V_WGA+4+t}, 0x2000, v{V_WGA+t}")
        p.e(f"v_add_u32 v{V_WGA2+t}, 0x10000, v{V_WGA+t}\nv_add_u32 v{V_WGA2+4+t}, 0x10000, v{V_WGA+4+t}")
    p.e(f"s_lshl_b32 s6, s{S_WAVE}, 6\nv_add_u32 v8, s6, v4\nv_lshlrev_b32 v8, 7, v8\nv_lshrrev_b32 v9, 1, v4\nv_xor_b32 v9, v9, v1")
    p.e(f"v_lshl_add_u32 v{V_XA}, v9, 4, v8\nv_xor_b32 v9, 4, v9\nv_lshl_add_u32 v{V_XA+1}, v9, 4, v8")
    p.e(f"v_lshl_add_u32 v8, v2, 4, v3\nv_lshlrev_b32 v8, 8, v8\nv_xor_b32 v9, v1, v4\ns_lshl_b32 s6, s{S_WAVE}, 2\nv_xor_b32 v9, s6, v9")
    for c in range(4): p.e(f"v_xor_b32 v51, {4*c}, v9\nv_lshl_add_u32 v{V_KA+c}, v51, 4, v8")
    p.e("v_lshl_add_u32 v8, v1, 4, v2\nv_lshlrev_b32 v8, 8, v8\nv_lshl_add_u32 v8, v3, 3, v8\nv_add_u32 v8, 0x10000, v8")
    p.e("v_and_b32 v9, 1, v1\nv_lshl_add_u32 v9, v9, 2, v2")
    for d in range(8): p.e(f"v_xor_b32 v51, {d}, v9\nv_lshl_add_u32 v{V_VA+d}, v51, 5, v8")
    p.e(f"s_lshl_b32 s6, s{S_WAVE}, 4\nv_add_u32 v8, s6, v1\nv_lshlrev_b32 v8, 8, v8")
    p.e(f"s_lshl_b32 s6, s{S_WAVE}, 2\nv_add_u32 v9, s6, v1\nv_xor_b32 v9, v9, v4\nv_lshl_add_u32 v{V_KD}, v9, 4, v8")
    p.e(f"s_and_b32 s6, s{S_WAVE}, 1\ns_lshl_b32 s6, s6, 2\nv_add_u32 v9, s6, v1\nv_lshlrev_b32 v9, 1, v9\nv_xor_b32 v9, v9, v4\nv_lshl_add_u32 v{V_VD}, v9, 4, v8")
    p.e(f"v_lshlrev_b32 v{V_C16}, 4, v{V_LANE}\nv_add_u32 v{V_C16B}, 4096, v{V_C16}")
    p.e("s_cmp_lt_u32 s2, 128\ns_cselect_b32 s86, s86, s88\ns_cselect_b32 s87, s87, s89\ns_and_b32 s6, s2, 127\ns_mul_i32 s6, s6, 40960")
    srd_off(p, S_RS, 86, "s6", 40960)
    srd_off(p, S_RD, 68, WS_WF, 8*WF_CT)
    p.e(f"s_cmp_lt_u32 s2, {NSTEP}\ns_cselect_b32 s{S_RS+2}, s{S_RS+2}, 0\ns_cselect_b32 s{S_RD+2}, s{S_RD+2}, 0")
    p.e(f"s_mul_i32 s{S_RO0}, s{S_WAVE}, {2*WF_CT}\ns_mul_i32 s6, s2, 5120\ns_add_u32 s{S_RO0}, s{S_RO0}, s6\ns_add_u32 s{S_RO1}, s{S_RO0}, {WF_CT}")
    p.e(f"s_add_u32 s6, s{S_MX}, {LDS_RL}\nv_lshrrev_b32 v8, 2, v{V_LANE}\nv_mul_u32_u24 v8, 160, v8\nv_mul_u32_u24 v9, 40, v3\nv_add3_u32 v{V_RLA}, v8, v9, s6\nv_add_u32 v{V_RLW}, s6, v{V_C16}")
    p.e(f"s_lshl_b32 s6, s{S_QB}, 11\ns_add_u32 s6, s6, {WS_ST}")
    srd_off(p, S_STT, 68, "s6", 2048)
    for r in range(4): p.e(f"v_mov_b32 v{V_ONES+r}, 0x3f803f80")
    srd(p, S_DBG, "s62", "s63", 256)
    if OPT['fine']: p.e(f"s_mov_b32 s{S_FI}, 0\nv_mov_b32 v{V_FS}, 0")

def adv_mod(r,n): return [f"s_add_u32 s{r}, s{r}, 1", f"s_cmp_eq_u32 s{r}, {n}", f"s_cselect_b32 s{r}, 0, s{r}"]
def wslot(c): return (c+1)%3
def x_dma(c):
    G=[]
    for h in range(2):
        for i in range(4):
            g=[]
            if i==0: g.append(f"s_add_u32 m0, s{S_MX}, {(c&1)*32768+h*4096}")
            if i==0 and h==0: g.append(f"s_lshl_b32 s{S_XOFF}, s{S_KX}, 7")
            g.append(f"buffer_load_dwordx4 v{V_XD+h*4+i}, {sr(S_X)}, s{S_XOFF} offen offset:{i*1024} lds @x{c}")
            if i==1 and h==0: g+=adv_mod(S_KX,10)
            G.append(g)
    return G
def w_dma(c):
    G=[]
    o=65536+wslot(c)*32768
    for base,lo,srd_,so,st in ((V_WQD,0,S_WQ,S_WQOFF,64*8192),(V_WGD,16384,S_WG,S_WGOFF,64*3456)):
        for i in range(4):
            g=[]
            if i==0: g+= [f"s_add_u32 m0, s{S_MW}, {o+lo}", f"s_mul_i32 s{so}, s{S_KW}, {st}"]
            g.append(f"buffer_load_dwordx4 v{base+i}, {sr(srd_)}, s{so} offen offset:{i*1024} lds @w{c}")
            if i==1 and lo: g+=adv_mod(S_KW,10)
            G.append(g)
    return G
def kv_dma(kind, j):
    G=[]
    lo,vd,srd_,so = (0,V_KD,S_K,S_KOFF) if kind=='K' else (65536,V_VD,S_V,S_VOFF)
    for i in range(4):
        g=[]
        if i==0: g.append(f"s_add_u32 m0, s{S_MW}, {lo+(j&3)*16384}")
        g.append(f"buffer_load_dwordx4 v{vd}, {sr(srd_)}, s{so} offen offset:{i*1024} lds @{kind}{j}")
        if i==3: g.append(f"s_add_u32 s{so}, s{so}, 16384")
        G.append(g)
    return G
def flat(p,G):
    for g in G:
        for t in g: p.e(t)

def pro_areads(T, c):
    b=192+(T%4)*8; ws=wslot(c); o=(ws&1)*32768 if ws<2 else 0
    R=[]
    for s in range(2):
        for hf in range(2):
            d=b+s*4+hf*2
            if T<8:
                R.append(f"ds_read_b64_tr_b16 a[{d}:{d+1}], v{(V_WQA if ws<2 else V_WQA2)+(T>>1)} offset:{o+s*8192+hf*1024+(T&1)*8}")
            else:
                R.append(f"ds_read_b64_tr_b16 a[{d}:{d+1}], v{(V_WGA if ws<2 else V_WGA2)+(T-8)} offset:{o+s*4096+hf*512}")
    return R
def pro_breads(c):
    st=c&1
    return [f"ds_read_b128 {r4('a',128+st*32+(qt*2+s)*4)}, v{V_XA+s} offset:{st*32768+qt*2048}" for qt in range(4) for s in range(2)]


V_Z=252
def arrive(label, word_off_expr):
    o=[I(f"s_cmp_lg_u32 s{S_WAVE}, 0"), I(f"s_cbranch_scc1 {label}")]
    for t in [f"s_lshl_b32 s{S_T0}, s{S_QB}, 5", f"v_mov_b32 v{V_Z+1}, 1", "s_mov_b64 exec, 1",
              f"buffer_atomic_add v{V_Z+1}, v{V_Z}, {sr(S_DBG)}, s{S_T0} offen offset:{word_off_expr} sc1", "s_mov_b64 exec, -1"]:
        o.append(I(t,'slow'))
    o.append(I(f"{label}:"))
    return o

def pro_chunk(c):
    st=c&1
    mf=[]; tg=[]
    for T in range(16):
        tg.append(len(mf))
        for qt in range(4):
            for s in range(2):
                acc = r4('v',(T*4+qt)*4) if T<8 else r4('a',((T-8)*4+qt)*4)
                cc = "0" if (c==0 and s==0) else acc
                mf.append(f"{MF} {acc}, {r4('a',192+(T%4)*8+s*4)}, {r4('a',128+st*32+(qt*2+s)*4)}, {cc}")
        if T in (0,1,8,9):
            acc=r4('v',V_CS+((T>>3)*2+(T&1))*4)
            for s in range(2):
                mf.append(f"{MF} {acc}, {r4('a',192+(T%4)*8+s*4)}, {r4('v',V_ONES)}, {'0' if (c==0 and s==0) else acc}")
    G=Gaps(mf)
    for T in range(14):
        for k,t in enumerate(pro_areads(T+2, c)): G.put(tg[T]+2*k, t)
    D=[]; gap=OPT['dmagap']
    g00=1
    if c==0:
        if OPT['fast0']: D+=w_dma(1)+x_dma(1)+w_dma(2)+x_dma(2); gap=OPT['gap0']
        else: D+=x_dma(2); g00=9
    if 1<=c<=7: D+=w_dma(c+2)+x_dma(c+2)
    if c==7:
        D.insert(0,[f"s_lshl_b32 s{S_T1}, s{S_QB}, 5", f"s_add_u32 s{S_T1}, s{S_T1}, 16", f"buffer_load_dword v{V_POLL}, v{V_Z}, {sr(S_DBG)}, s{S_T1} offen sc1"]); gap=6
    if c==8:
        gap=OPT['rlgap']
        for qt in range(4): D.append([f"buffer_load_dwordx2 v[{V_ST+2*qt}:{V_ST+2*qt+1}], v{V_PADDR}, {sr(S_STT)}, 0 offen offset:{qt*128} sc1"])
        for pr in range(2):
            for i in range(5):
                D.append([f"buffer_load_dwordx4 {r4('v',V_RL+pr*20+i*4)}, v{V_RL+20+i*4}, {sr(S_RS)}, 0 offen offset:{pr*160}"])
    if c==9:
        g=71
        for pr in range(2):
            for i in range(5): G.put(g, f"ds_write_b128 v{V_RLW}, {r4('v',V_RL+pr*20+i*4)} offset:{i*1024}"); g+=2
            for nt in range(5):
                d=V_RL+pr*20+nt*4
                G.put(g, f"ds_read_b64_tr_b16 v[{d}:{d+1}], v{V_RLA} offset:{nt*8}"); g+=1
                G.put(g, f"ds_read_b64_tr_b16 v[{d+2}:{d+3}], v{V_RLA} offset:{nt*8+16*160}"); g+=1
        g+=2
        for pr in range(2):
            for nt in range(5):
                va,o=(V_C16,nt*1024) if nt<4 else (V_C16B,0)
                G.put(g, f"buffer_store_dwordx4 {r4('v',V_RL+pr*20+nt*4)}, v{va}, {sr(S_RD)}, s{S_RO0+pr} offen offset:{o} sc1"); g+=2
        assert g<=len(mf), g
        gap=4
        D=kv_dma('K',0)+kv_dma('K',1)+kv_dma('V',0)+kv_dma('V',1)
    for k,g in enumerate(D): G.group((g00+gap*k)|1, g)
    if c==3 and OPT['pf']:
        for t in [f"s_lshl_b32 s{S_T0}, s{S_QB}, 1", f"s_lshr_b32 s{S_T1}, s{S_WAVE}, 1", f"s_add_u32 s{S_T0}, s{S_T0}, s{S_T1}", f"s_lshl_b32 s{S_T0}, s{S_T0}, 12",
                  f"s_and_b32 s{S_T1}, s{S_WAVE}, 1", f"s_lshl_b32 s{S_T1}, s{S_T1}, 31", f"s_or_b32 s{S_T2}, s{S_T0}, s{S_T1}", f"s_xor_b32 s{S_T0}, s{S_T2}, 0x80000000"]: G.put(110,t)
        G.put(113, f"buffer_load_dword v{V_PF}, v{V_PADDR}, {sr(S_K)}, s{S_T2} offen @pf")
        G.put(115, f"buffer_load_dword v{V_PF}, v{V_PADDR}, {sr(S_V)}, s{S_T0} offen @pf")
    out=None
    if c<9:
        g0=tg[14]
        w = f"WAITTOK lgkmcnt(0) @x{c+1},w{c+1}"+(",st" if c==1 else "")
        for t in fine_pre()+[w,"s_barrier"]+fine_post(): G.put(g0,t)
        R=pro_breads(c+1); A0=pro_areads(0,c+1); A1=pro_areads(1,c+1)
        for k,t in enumerate([R[0],R[1]]+A0+R[2:]+A1): G.put(g0+k,t)
    out=G.emit()
    if c==1: out+=arrive("K1_arrS",16)
    if c==7:
        out+=spin("K1_spinS",S_DBG,f"s{S_T1}",32,V_Z)
        out+=[f"v_and_b32 v{V_PADDR}, 15, v{V_LANE}", f"s_lshl_b32 s{S_T0}, s{S_WAVE}, 6", f"v_add_u32 v{V_PADDR}, s{S_T0}, v{V_PADDR}", f"v_lshlrev_b32 v{V_PADDR}, 3, v{V_PADDR}"]
    return out

def ln_stats(p):
    for i in range(10): p.e(f"v_lshlrev_b32 v{20+2*i}, 16, v{10+i}\nv_and_b32 v{21+2*i}, 0xffff0000, v{10+i}")
    def red32(r, t):
        for m in ("quad_perm:[1,0,3,2]","quad_perm:[2,3,0,1]","row_half_mirror","row_mirror"):
            p.e(f"v_add_f32_dpp v{r}, v{r}, v{r} {m} row_mask:0xf bank_mask:0xf")
        p.e(f"v_mov_b32 v{t}, v{r}\nv_permlane16_swap_b32 v{r}, v{t}\nv_add_f32 v{r}, v{r}, v{t}")
    p.e("v_pk_add_f32 v[40:41], v[20:21], v[22:23]")
    for i in range(24,40,2): p.e(f"v_pk_add_f32 v[40:41], v[40:41], v[{i}:{i+1}]")
    p.e("v_add_f32 v40, v40, v41")
    red32(40, 41)
    p.e(f"v_mul_f32 v40, 0x{f2u(-1.0/640):08x}, v40")
    for i in range(20,40,2): p.e(f"v_pk_add_f32 v[{i}:{i+1}], v[{i}:{i+1}], v[40:41] op_sel_hi:[1,0]")
    p.e("v_pk_mul_f32 v[42:43], v[20:21], v[20:21]")
    for i in range(22,40,2): p.e(f"v_pk_fma_f32 v[42:43], v[{i}:{i+1}], v[{i}:{i+1}], v[42:43]")
    p.e("v_add_f32 v41, v42, v43")
    red32(41, 42)
    p.e(f"v_mul_f32 v41, 0x{f2u(1.0/640):08x}, v41")
    bf16_round(p,40,40); bf16_round(p,41,41)
    p.e(f"v_add_f32 v41, 0x{f2u(1e-5):08x}, v41"); bf16_round(p,41,41)
    p.e("v_sqrt_f32 v41, v41"); bf16_round(p,41,41)
    p.e("v_rcp_f32 v41, v41")
    p.e("v_lshlrev_b32 v48, 3, v48\ns_mov_b32 exec_lo, 1\ns_mov_b32 exec_hi, 1")
    p.e(f"buffer_store_dwordx2 v[40:41], v48, {sr(S_STT)}, 0 offen sc1 @st\ns_mov_b64 exec, -1")

def prologue(p):
    flat(p, x_dma(0)+w_dma(0)+([] if OPT['fast0'] else x_dma(1)+w_dma(1)+w_dma(2)))
    if OPT['pf']:
        NR=OPT['pfrows']
        p.e(f"s_mul_i32 s6, s{S_QB}, {NR}\ns_add_u32 s6, s6, {OPT['pfrow0']}\ns_mul_i32 s7, s6, 3456")
        p.e(f"s_lshr_b32 s{S_T0}, s{S_WAVE}, 1\ns_mul_i32 s{S_T0}, s{S_T0}, {NR//2}\ns_add_u32 s6, s6, s{S_T0}\ns_lshl_b32 s6, s6, 13")
        p.e(f"s_and_b32 s{S_T0}, s{S_WAVE}, 1\ns_lshl_b32 s{S_T0}, s{S_T0}, 31\ns_or_b32 s7, s7, s{S_T0}\ns_xor_b32 s{S_T0}, s{S_T0}, 0x80000000\ns_or_b32 s6, s6, s{S_T0}")
        p.e(f"v_min_u32 v52, {NR-1}, v{V_LANE}\nv_mul_u32_u24 v53, 3456, v52")
        p.e(f"v_lshrrev_b32 v54, 1, v52\nv_lshlrev_b32 v54, 13, v54\nv_and_b32 v52, 1, v52\nv_lshl_add_u32 v54, v52, 7, v54")
        p.e(f"buffer_load_dword v{V_PF}, v53, {sr(S_WG)}, s7 offen @pf")
        p.e(f"buffer_load_dword v{V_PF}, v54, {sr(S_WQ)}, s6 offen @pf")
        p.e(f"v_and_b32 v{V_PADDR}, 31, v{V_LANE}\nv_lshlrev_b32 v{V_PADDR}, 7, v{V_PADDR}")
    setup2(p)
    for i in range(5):
        d=V_RL+20+i*4
        p.e(f"v_add_u32 v52, {64*i}, v{V_LANE}\nv_mul_u32_u24 v53, 6554, v52\nv_lshrrev_b32 v53, 16, v53\nv_mul_u32_u24 v54, 10, v53\nv_sub_u32 v52, v52, v54")
        p.e(f"v_mul_u32_u24 v53, 1280, v53\nv_lshl_add_u32 v53, v52, 4, v53\ns_mul_i32 s{S_T0}, s{S_WAVE}, 320\nv_add_u32 v{d}, s{S_T0}, v53")
    p.e(f"v_mov_b32 v{V_Z}, 0")
    ln_stats(p)
    p.e("WAITTOK @x0,w0\ns_barrier")
    stamp(p,1)
    for t in pro_breads(0)+pro_areads(0,0)+pro_areads(1,0): p.e(t)
    for c in range(10): p.ext(pro_chunk(c))

def pro_epilogue(p):
    p.e(f"v_lshrrev_b32 v{V_CSA}, 4, v{V_LANE}\nv_lshlrev_b32 v{V_CSA}, 4, v{V_CSA}\ns_lshl_b32 s{S_T0}, s{S_WAVE}, 7\ns_add_u32 s{S_T0}, s{S_T0}, {LDS_CS}\nv_add_u32 v{V_CSA}, s{S_T0}, v{V_CSA}")
    for c in range(1,4): p.e(f"v_xor_b32 v{V_CSA+c}, {c*128}, v{V_CSA}")
    p.e("s_mov_b32 exec_lo, 0x00010001\ns_mov_b32 exec_hi, 0x00010001")
    for k in range(4): p.e(f"ds_write_b128 v{V_CSA}, {r4('v',V_CS+k*4)} offset:{(k&1)*64+(k>>1)*512}")
    p.e("s_mov_b64 exec, -1")
    p.e("s_waitcnt lgkmcnt(0)\ns_barrier")
    def csreg(T): return V_CS+T*4 if T<4 else (T-4)*4
    def csread(T): p.e(f"ds_read_b128 {r4('v',csreg(T))}, v{V_CSA+((T&7)>>1)} offset:{(T&1)*64+(T>>3)*512}")
    for T in range(4): csread(T)
    flat(p, kv_dma('K',2))
    sc = math.log2(math.e)/math.sqrt(128.0)
    for qt in range(4): p.e(f"v_mul_f32 v{244+qt}, 0x{f2u(sc):08x}, v{V_ST+2*qt+1}\nv_mul_f32 v{248+qt}, v{V_ST+2*qt+1}, v{V_ST+2*qt+1}")
    def bc(r):
        return f"v[{r&~1}:{(r&~1)+1}]", r&1
    def pkfma(d, a, breg, c):
        pr,o=bc(breg); return f"v_pk_fma_f32 v[{d}:{d+1}], v[{a}:{a+1}], {pr}, v[{c}:{c+1}] op_sel:[0,{o},0] op_sel_hi:[1,{o},1]"
    def pkmul(d, a, breg):
        pr,o=bc(breg); return f"v_pk_mul_f32 v[{d}:{d+1}], v[{a}:{a+1}], {pr} op_sel:[0,{o}] op_sel_hi:[1,{o}]"
    for T in range(8):
        for qt in range(4):
            b=(T*4+qt)*4
            for z in (0,2): p.e(pkfma(b+z, csreg(T)+z, V_ST+2*qt, b+z))
            for z in (0,2): p.e(pkmul(b+z, b+z, 244+qt))
            d=V_Q+(qt*4+(T>>1))*4+(T&1)*2
            p.e(f"v_cvt_pk_bf16_f32 v{d}, v{b}, v{b+1}\nv_cvt_pk_bf16_f32 v{d+1}, v{b+2}, v{b+3}")
        if T<3:
            for TT in range(4+4*T,8+4*T): csread(TT)
    p.e(f"s_waitcnt lgkmcnt(0)\ns_cmp_lt_u32 s{S_WAVE}, 2\ns_cbranch_scc0 K1_hB")
    for var in range(2):
        if var==1: p.e("s_branch K1_hdone\nK1_hB:")
        for t in range(4):
            for qt in range(4):
                g=(t*4+qt)*4; tb=48+((t*4+qt)&1)*8
                for r in range(4): p.e(f"v_accvgpr_read_b32 v{tb+r}, a{g+r}\nv_accvgpr_read_b32 v{tb+4+r}, a{64+g+r}")
                for z in (0,2): p.e(pkfma(tb+z, csreg(8+t)+z, V_ST+2*qt, tb+z)); p.e(pkfma(tb+4+z, csreg(12+t)+z, V_ST+2*qt, tb+4+z))
                gb, ub = (tb,tb+4) if var==0 else (tb+4,tb)
                for r in range(4): p.e(f"v_max_f32 v{gb+r}, 0, v{gb+r}")
                for z in (0,2): p.e(pkmul(ub+z, ub+z, 248+qt))
                for z in (0,2): p.e(f"v_pk_mul_f32 v[{tb+z}:{tb+z+1}], v[{tb+z}:{tb+z+1}], v[{tb+4+z}:{tb+5+z}]")
                d=64+((t>>1)*4+qt)*4+(t&1)*2
                p.e(f"v_cvt_pk_bf16_f32 v{d}, v{tb}, v{tb+1}\nv_cvt_pk_bf16_f32 v{d+1}, v{tb+2}, v{tb+3}")
    p.e("K1_hdone:")
    p.e(f"s_lshl_b32 s{S_T0}, s{S_SIG}, 1\ns_and_b32 s{S_T1}, s{S_WAVE}, 1\ns_add_u32 s{S_T0}, s{S_T0}, s{S_T1}\ns_add_u32 s{S_T0}, s{S_T0}, 128\ns_lshl_b32 s{S_T0}, s{S_T0}, 12\ns_xor_b32 s{S_T1}, s{S_T0}, 4096")
    for c2 in range(2):
        for qt in range(4):
            p.e(f"buffer_store_dwordx4 {r4('v',64+(c2*4+qt)*4)}, v{V_C16}, {sr(S_AF)}, s{S_T0+c2} offen offset:{qt*1024} sc1")
    p.e(f"s_lshl_b32 s{S_T0}, s{S_QB}, 2\ns_add_u32 s{S_T0}, s{S_T0}, s{S_WAVE}\ns_lshl_b32 s{S_T0}, s{S_T0}, 5\ns_add_u32 s{S_T0}, s{S_T0}, s{S_HEAD}\ns_lshl_b32 s{S_FOFF}, s{S_T0}, 2")
    p.e(f"s_mov_b64 exec, 1\nbuffer_store_dword v{V_Z}, v{V_Z}, {sr(S_FL)}, s{S_FOFF} offen sc1 @pub\ns_mov_b64 exec, -1")
    for r in range(64,128): p.e(f"v_accvgpr_write_b32 a{r}, 0")
    for r in range(4): p.e(f"v_mov_b32 v{V_L+r}, 0")

def kreads(j, kts):
    return [f"ds_read_b128 {r4('a',A_K+(kt*4+c)*4)}, v{V_KA+c} offset:{(j&3)*16384+kt*1024}" for kt in kts for c in range(4)]
def vreads(j, dts):
    R=[]
    for dt in dts:
        for u in range(2):
            for hf in range(2):
                d=A_V+(dt*2+u)*4+hf*2
                R.append(f"ds_read_b64_tr_b16 a[{d}:{d+1}], v{V_VA+dt} offset:{(j&3)*16384+u*2048+hf*1024}")
    return R
def qk(u, zero=False):
    M=[]
    for kt in (2*u,2*u+1):
        for qt in range(4):
            d=r4('v',V_S+(kt*4+qt)*4)
            for c in range(4):
                cc = d if c else ("0" if zero else r4('v',V_NM+qt*4))
                M.append(f"{MF} {d}, {r4('a',A_K+(kt*4+c)*4)}, {r4('v',V_Q+(qt*4+c)*4)}, {cc}")
    return M
def pv(j, dts, zero=False):
    M=[]
    for dt in dts:
        for qt in range(4):
            d=r4('a',(dt*4+qt)*4)
            for u in range(2):
                M.append(f"{MF} {d}, {r4('a',A_V+(dt*2+u)*4)}, {r4('v',V_P+(j&1)*32+(u*4+qt)*4)}, {'0' if zero and u==0 else d}")
    return M
def softmax(j, kt):
    X=[];A=[];C=[]
    u=kt>>1
    for qt in range(4):
        b=V_S+(kt*4+qt)*4
        for r in range(4):
            X.append(f"v_exp_f32 v{b+r}, v{b+r}")
            A.append(f"v_add_f32 v{V_L+qt}, v{V_L+qt}, v{b+r}")
        d=V_P+(j&1)*32+(u*4+qt)*4+(kt&1)*2
        C.append(f"v_cvt_pk_bf16_f32 v{d}, v{b}, v{b+1}"); C.append(f"v_cvt_pk_bf16_f32 v{d+1}, v{b+2}, v{b+3}")
    return X,A,C

def segment(mf, sm, lds, dma, pre=(), early_lds=False):
    if mf is None and sm:
        X,A,C=sm
        out=[t.replace('S_','s_',1) if t.startswith('S_') else t for t in pre]+list(lds)
        for g in dma: out+=g
        return out+X+A+C
    G=Gaps(mf)
    for t in pre: G.put(0,t)
    if sm:
        X,A,C=sm
        for k in range(16):
            G.put(2*k,X[k]); G.put(2*k+1,A[k])
            if k&1: G.put(2*k+1,C[k>>1])
        base=[4*k+1 for k in range(8)]
        over=[3,11,19,27,7,23,15,31]
        if early_lds: base=base[:7]; over=[3,11,19,15,7,23]
        slots=sorted(base+over[:max(0,len(lds)-len(base))])[:len(lds)] if len(lds)>len(base) else base[:len(lds)]
        dg=[7,23,15,31,3,11,19,27]
        if early_lds: dg=[27,29,31,23]
        dg=sorted(dg[:len(dma)])
    else:
        slots=[2*k for k in range(16)][:len(lds)]
        dg=[2*k+1 for k in range(16)][:len(dma)]
    assert len(slots)==len(lds) and len(dg)==len(dma)
    for g,t in zip(slots,lds): G.put(g,t)
    for g,grp in zip(dg,dma): G.group(g,grp)
    return G.emit()

NT=32
def period(j, X=None):
    X=X or {}
    out=[]
    hasK = j<NT; hasV = 0<=j-1<NT
    D = (kv_dma('K',j+3) if j+3<NT+1 else [])+(kv_dma('V',j+2) if j+2<NT else [])
    D = [D[0:2],D[2:4],D[4:6],D[6:8]]
    if j==0: D=[[],[],D[0]+D[1],D[2]+D[3]]
    for k,sg in enumerate("ABCD"): D[k]=D[k]+X.get(sg,[])
    KR0=kreads(j,(0,1)) if hasK else []; KR1=kreads(j,(2,3)) if hasK else []
    V=vreads(j-1,range(8)) if hasV else []
    pre=fine_pre()+[f"WAITTOK lgkmcnt(0) @K{j},V{j-1}"+(",pub" if j==1 else ""),"s_barrier"]+fine_post() if (j>=1 and (hasK or hasV)) else []
    if j>=1:
        out+=segment(pv(j-2,range(4,8)) if j-2>=0 else None, softmax(j-1,2) if j-1<NT else None, KR0+V[0:4], D[0], pre)
        out+=X.get('mid',[])
        if j-1<NT:
            out+=segment(qk(0) if hasK else None, softmax(j-1,3), KR1+V[4:8]+([] if hasK else V[8:16]), D[1])
    if j<NT:
        out+=segment(qk(1), softmax(j,0), V[8:20], D[2])
        out+=segment(pv(j-1,range(4),zero=(j==1)) if j>=1 else None, softmax(j,1), V[20:32], D[3], early_lds=OPT['earlylds'])
    elif j==NT:
        out+=segment(pv(j-1,range(4)), None, V[16:32], D[3])
    return out

def att_start(p):
    p.e("WAITTOK @K0\ns_barrier")
    for t in kreads(0,(0,1,2,3)): p.e(t)
    for t in qk(0,zero=True): p.e(t)
    for qt in range(4):
        a=V_S+qt*4; b=V_S+(4+qt)*4; m=V_NM+qt*4
        p.e(f"v_max3_f32 v{m}, v{a}, v{a+1}, v{a+2}\nv_max3_f32 v{m+1}, v{a+3}, v{b}, v{b+1}\nv_max3_f32 v{m}, v{m}, v{b+2}, v{b+3}\nv_max_f32 v{m}, v{m}, v{m+1}")
        p.e(f"v_mov_b32 v{m+1}, v{m}\nv_permlane16_swap_b32 v{m}, v{m+1}\nv_max_f32 v{m}, v{m}, v{m+1}")
        p.e(f"v_mov_b32 v{m+1}, v{m}\nv_permlane32_swap_b32 v{m}, v{m+1}\nv_max_f32 v{m}, v{m}, v{m+1}")
        p.e(f"v_sub_f32 v{m}, 0, v{m}\nv_mov_b32 v{m+1}, v{m}\nv_mov_b32 v{m+2}, v{m}\nv_mov_b32 v{m+3}, v{m}")
        for r in range(4): p.e(f"v_add_f32 v{a+r}, v{a+r}, v{m}\nv_add_f32 v{b+r}, v{b+r}, v{m}")

S_CA, S_CW, S_XI, S_OUT = 8, 12, 16, 24
S_AO=40; S_WO=41; S_AD=42; S_WD=43; S_LA=45; S_LW=55; S_SPIN=54
def spin(label, srd_, soff, expect, va=V_PADDR):
    o=[(f"s_mov_b32 s{S_SPIN}, 0x100000",None),(f"v_mov_b32 v{V_POLL}, v{V_POLL}",None),(f"{label}:",None),
       (f"v_cmp_gt_u32 vcc, {expect}, v{V_POLL}",None),(f"s_cbranch_vccz {label}_ok",None),
       ("s_sleep 2",'slow'),(f"buffer_load_dword v{V_POLL}, v{va}, {sr(srd_)}, {soff} offen sc1",'slow'),
       (f"s_sub_u32 s{S_SPIN}, s{S_SPIN}, 1",'slow'),(f"s_cmp_lg_u32 s{S_SPIN}, 0",'slow'),("s_waitcnt vmcnt(0)",'slow'),(f"s_cbranch_scc1 {label}",'slow'),
       (f"{label}_ok:",None)]
    return [I(t,g) for t,g in o]

def c_setup(p):
    p.e(f"s_mul_i32 s{S_T0}, s{S_RT}, {AF_RT}\ns_add_u32 s{S_T0}, s{S_T0}, {WS_AF}")
    srd_off(p, S_CA, 68, f"s{S_T0}", NSTEP*4096)
    p.e(f"s_mul_i32 s{S_T0}, s{S_CT}, {WF_CT}\ns_add_u32 s{S_T0}, s{S_T0}, {WS_WF}")
    srd_off(p, S_CW, 68, f"s{S_T0}", NSTEP*5120)
    srd(p, S_XI, "s92", "s93", 2048*1280)
    p.e(f"s_lshl_b32 s{S_AO}, s{S_WAVE}, 17\ns_mul_i32 s{S_WO}, s{S_WAVE}, {32*5120}")
    p.e(f"s_mul_i32 s{S_T0}, s{S_WAVE}, 14\ns_add_u32 s{S_T0}, s{S_T0}, 128\ns_lshl_b32 s{S_AD}, s{S_T0}, 12\ns_mul_i32 s{S_WD}, s{S_T0}, 5120")
    p.e(f"v_and_b32 v{V_PADDR}, 7, v{V_LANE}\nv_lshlrev_b32 v{V_PADDR}, 5, v{V_PADDR}")
    if OPT['rotC']:
        p.e(f"s_lshl_b32 s{S_RO}, s{S_CT}, 1\ns_add_u32 s{S_RO}, s{S_RO}, s{S_RT}\ns_and_b32 s{S_RO}, s{S_RO}, 7\ns_mul_i32 s{S_RA}, s{S_RO}, 7\ns_lshr_b32 s{S_RA}, s{S_RA}, 2")
        p.e(f"s_mul_i32 s{S_RO}, s{S_RO}, {OPT['grp']//8}")
    else: p.e(f"s_mov_b32 s{S_RO}, 0\ns_mov_b32 s{S_RA}, 0")

PRE_STRIPES={('A',0):16384, ('W',0):65536, ('A',1):131072, ('W',1):131072+16384, ('A',2):32768, ('W',2):65536+16384}
class CState:
    def __init__(self):
        self.free=[]; self.A={}; self.W={}
    def off(self,t,dst,bd,bo,stride):
        if t<14:
            return [f"s_add_u32 s{dst}, s{S_RA}, {t}", f"s_sub_u32 s{S_T2}, s{dst}, 14", f"s_cmp_ge_u32 s{dst}, 14", f"s_cselect_b32 s{dst}, s{S_T2}, s{dst}",
                    f"s_mul_i32 s{dst}, s{dst}, {stride}", f"s_add_u32 s{dst}, s{dst}, s{bd}"]
        u=t-14
        GG=OPT['grp']-1
        return [f"s_add_u32 s{dst}, s{S_RO}, {u&GG}", f"s_and_b32 s{dst}, s{dst}, {GG}", f"s_add_u32 s{dst}, s{dst}, {u&~GG}",
                f"s_mul_i32 s{dst}, s{dst}, {stride}", f"s_add_u32 s{dst}, s{dst}, s{bo}"]
    def offA(self,t): return self.off(t,S_LA,S_AD,S_AO,4096)
    def offW(self,t): return self.off(t,S_LW,S_WD,S_WO,5120)
    def loadA(self, t):
        fr=[self.free.pop(0) for _ in range(4)]; self.A[t]=fr
        G=[[f"buffer_load_dwordx4 {fr[i]}, v{V_C16}, {sr(S_CA)}, s{S_LA} offen offset:{i*1024} sc1"] for i in range(4)]
        G[0]=self.offA(t)+G[0]; return G
    def loadW(self, t, only5=False):
        if only5:
            fr=[None]*4+[self.free.pop(0)]; G=[]
        else:
            fr=[self.free.pop(0) for _ in range(5)]
            G=[[f"buffer_load_dwordx4 {fr[i]}, v{V_C16}, {sr(S_CW)}, s{S_LW} offen offset:{i*1024} sc1"] for i in range(4)]
        self.W[t]=fr
        G+=[[f"buffer_load_dwordx4 {fr[4]}, v{V_C16B}, {sr(S_CW)}, s{S_LW} offen sc1"]]
        G[0]=self.offW(t)+G[0]; return G
    def pre_dma(self, kind, t):
        srd_,so,off = (S_CA,S_LA,self.offA(t)) if kind=='A' else (S_CW,S_LW,self.offW(t))
        G=[[f"buffer_load_dwordx4 v{V_C16}, {sr(srd_)}, s{so} offen offset:{i*1024} sc1 lds @p{kind}{t}"] for i in range(4)]
        G[0]=[f"s_add_u32 m0, s{S_MW}, {PRE_STRIPES[(kind,t)]}"]+off+G[0]
        return G
    def pre_read(self, t, va):
        o=[f"WAITTOK @pA{t},pW{t}"]
        self.A[t]=[self.free.pop(0) for _ in range(4)]
        for i in range(4): self.W[t][i]=self.free.pop(0)
        for kind,fr in (('W',self.W[t]),('A',self.A[t])):
            b=PRE_STRIPES[(kind,t)]
            for i in range(4): o.append(f"ds_read_b128 {fr[i]}, v{va[b>>16]} offset:{(b&65535)+i*1024}")
        return o
    def step(self, t):
        ab = 128 if t<14 else 0
        M=[]
        for n in range(5):
            for q in range(4):
                d=r4('a',ab+(q*5+n)*4)
                M.append(f"{MF} {d}, {self.W[t][n]}, {self.A[t][q]}, {'0' if t in (0,14) else d}")
        self.free += self.A.pop(t)+self.W.pop(t)
        return M

def o_frag(k):
    c,qt=k>>2,k&3
    o=[]; tb=200; d=212+(k%3)*4
    for h in range(2):
        a=((2*c+h)*4+qt)*4
        for r in range(4): o.append(f"v_accvgpr_read_b32 v{tb+h*4+r}, a{a+r}")
    rl=V_NM+2*qt
    for z in range(4): o.append(f"v_pk_mul_f32 v[{tb+2*z}:{tb+2*z+1}], v[{tb+2*z}:{tb+2*z+1}], v[{rl}:{rl+1}]")
    for z in range(4): o.append(f"v_cvt_pk_bf16_f32 v{d+z}, v{tb+2*z}, v{tb+2*z+1}")
    if qt==0: o+= [f"s_lshl_b32 s{S_T0}, s{S_HEAD}, 14", f"s_add_u32 s{S_T0}, s{S_T0}, {c*4096}"]
    o.append(f"buffer_store_dwordx4 {r4('v',d)}, v{V_C16}, {sr(S_AF)}, s{S_T0} offen offset:{qt*1024} sc1 @ost")
    return o

def l2pf_groups():
    G=[]
    G.append([f"s_and_b32 s{S_T0}, s{S_CT}, 3", f"s_mul_i32 s{S_T0}, s{S_T0}, 7", f"s_add_u32 s{S_T0}, s{S_T0}, s{S_WAVE}", f"s_lshl_b32 s{S_T0}, s{S_T0}, 13", f"s_add_u32 s{S_T0}, s{S_T0}, {128*4096}",
              f"buffer_load_dword v{V_PF}, v{V_PADDR}, {sr(S_CA)}, s{S_T0} offen sc1 @pf"])
    G.append([f"s_add_u32 s{S_T0}, s{S_T0}, 32768", f"buffer_load_dword v{V_PF}, v{V_PADDR}, {sr(S_CA)}, s{S_T0} offen sc1 @pf"])
    G.append([f"s_and_b32 s{S_T1}, s{S_RT}, 7", f"s_lshl_b32 s{S_T1}, s{S_T1}, 2", f"s_add_u32 s{S_T1}, s{S_T1}, s{S_WAVE}", f"s_lshl_b32 s{S_T1}, s{S_T1}, 13", f"s_add_u32 s{S_T0}, s{S_T1}, {80*8192+16384}",
              f"buffer_load_dword v{V_PF}, v{V_PADDR}, {sr(S_CW)}, s{S_T0} offen sc1 @pf"])
    G.append([f"s_and_b32 s{S_T1}, s{S_RT}, 7", f"s_lshl_b32 s{S_T1}, s{S_T1}, 13", f"s_add_u32 s{S_T0}, s{S_T1}, s{S_WO}",
              f"buffer_load_dword v{V_PF}, v{V_PADDR}, {sr(S_CW)}, s{S_T0} offen sc1 @pf"])
    return G

def attention_and_c(p):
    LA,FPS,DRAIN=OPT['LA'],OPT['FPS'],OPT['DRAIN']
    C=CState()
    c_setup(p)
    att_start(p)
    stamp(p,4)
    p.ext(period(0)); p.ext(period(1,{'mid':arrive("K1_arrA",0)}))
    for j in range(2,30):
        for t in period(j): p.e(t, tag=f"per{j}")
    X={'A':[[f"buffer_load_dword v{V_POLL}, v{V_PADDR}, {sr(S_DBG)}, 0 offen sc1"]],
       'mid':spin("K1_spinA",S_DBG,"0",32)+[f"v_lshlrev_b32 v{V_PADDR}, 7, v{V_LANE}"]}
    npre=3 if OPT['ldspre'] else 0
    if npre:
        X['B']=C.pre_dma('W',0); X['C']=C.pre_dma('A',0); X['D']=C.pre_dma('W',1)
    if OPT['l2pfC']: X['D']=l2pf_groups()
    p.ext(period(30,X))
    X={}
    if npre:
        Z=C.pre_dma('A',1)+C.pre_dma('W',2)+C.pre_dma('A',2)
        X={'A':Z[0:3],'B':Z[3:6],'C':Z[6:9],'D':Z[9:12]}
    p.ext(period(31,X))
    C.free=[r4('v',b) for b in range(232,252 if OPT['stamps'] else 256,4)]+([r4('v',64)] if OPT['stamps'] else [])+[r4('v',b) for b in range(128,192,4)]+[r4('v',b) for b in range(0,32,4)]
    E=[]
    nw=na=npre
    for t in range(npre): E+=C.loadW(t,only5=True)
    if OPT['early']:
        for t in range(npre,npre+3): E+=C.loadW(t)+C.loadA(t)
        nw=na=npre+3
    p.ext(period(32,{'D':E[:16]}))
    p.ext(period(33,{'A':E[16:]}))
    stamp(p,5)
    C.free+=[r4('v',b) for b in range(32,128,4) if not (OPT['stamps'] and b==64)]+[r4('a',b) for b in range(208,256,4)]
    p.e(f"v_add_u32 v224, s{S_MW}, v{V_C16}\nv_add_u32 v225, 0x10000, v224\nv_add_u32 v{V_PF}, 0x20000, v224")
    va={0:224,1:225,2:V_PF}
    if npre:
        if OPT['l2pfC']:
            p.e("WAITTOK @pf")
            p.L.insert(len(p.L)-4, p.L.pop())
        for t in C.pre_read(0,va): p.e(t)
    while na<npre+LA and len(C.free)>=9+16:
        flat(p,C.loadW(nw)+C.loadA(na)); nw+=1; na+=1
    for qt in range(4):
        l=V_L+qt; T=200
        p.e(f"v_mov_b32 v{T}, v{l}\nv_permlane16_swap_b32 v{l}, v{T}\nv_add_f32 v{l}, v{l}, v{T}")
        p.e(f"v_mov_b32 v{T}, v{l}\nv_permlane32_swap_b32 v{l}, v{T}\nv_add_f32 v{l}, v{l}, v{T}")
        p.e(f"v_rcp_f32 v{V_NM+2*qt}, v{l}")
        p.e(f"v_mov_b32 v{V_NM+2*qt+1}, v{V_NM+2*qt}")
    p.e(f"v_and_b32 v{V_PADDR}, 31, v{V_LANE}\nv_lshlrev_b32 v{V_PADDR}, 2, v{V_PADDR}\ns_lshl_b32 s{S_T1}, s{S_RT}, 7")
    kf=0
    for t in range(46):
        if t+1<npre:
            for x in C.pre_read(t+1,va): p.e(x)
        while kf<16 and kf<(t+1)*FPS:
            for x in o_frag(kf): p.e(x)
            kf+=1
            if kf==16: C.free += [r4('a',b) for b in range(80,128,4)]
        if t==DRAIN:
            assert kf==16
            p.e(f"WAITTOK @ost\nv_mov_b32 v200, 0\nv_mov_b32 v201, 1\ns_mov_b64 exec, 1\nbuffer_store_dword v201, v200, {sr(S_FL)}, s{S_FOFF} offen sc1\ns_mov_b64 exec, -1")
            stamp(p,6)
        if t==14:
            p.e("s_barrier")
            p.e(f"s_mul_i32 s{S_T0}, s{S_WAVE}, 5120\nv_add_u32 v200, s{S_T0}, v{V_C16}\nv_add_u32 v201, 0x14000, v200\nv_add_u32 v205, 40960, v200\nv_add_u32 v206, 40960, v201")
            p.ext(spin("K1_spinO",S_FL,f"s{S_T1}",1))
            stamp(p,7)
            while na<14+LA:
                flat(p,C.loadA(na)); na+=1
            for q in range(4):
                for n in range(5):
                    p.e(f"ds_write_b128 v{201 if q<2 else 206}, {r4('a',128+(q*5+n)*4)} offset:{(q&1)*20480+n*1024}")
            p.e(f"s_lshl_b32 s{S_T0}, s{S_RT}, 6\ns_lshl_b32 s{S_T1}, s{S_WAVE}, 4\ns_add_u32 s{S_T0}, s{S_T0}, s{S_T1}")
            p.e(f"v_and_b32 v202, 15, v{V_LANE}\nv_add_u32 v202, s{S_T0}, v202\nv_mul_u32_u24 v202, 1280, v202")
            p.e(f"v_lshrrev_b32 v203, 4, v{V_LANE}\nv_mul_u32_u24 v203, 40, v203\nv_add_u32 v202, v202, v203\ns_mul_i32 s{S_T1}, s{S_CT}, 160\nv_add_u32 v202, s{S_T1}, v202")
            for n in range(5): p.e(f"buffer_load_dwordx2 v[{212+2*n}:{213+2*n}], v202, {sr(S_XI)}, 0 offen offset:{8*n}")
            srd(p, S_OUT, "s94", "s95", 2048*1280)
            p.e(f"s_mul_i32 s{S_T0}, s{S_WAVE}, 20480\nv_add_u32 v203, s{S_T0}, v{V_C16}\nv_add_u32 v204, 0x14000, v203")
        if t==16:
            p.e("s_waitcnt lgkmcnt(0)\ns_barrier")
            for n in range(5):
                for src in range(4): p.e(f"ds_read_b128 {r4('a',128+(n*4+src)*4)}, v204 offset:{src*5120+n*1024}")
        if 17<=t<22:
            n=t-17
            for r in range(4):
                for src in range(4): p.e(f"v_accvgpr_read_b32 v{192+src}, a{128+(n*4+src)*4+r}")
                p.e("v_add_f32 v192, v192, v193\nv_add_f32 v194, v194, v195\nv_add_f32 v192, v192, v194")
                p.e(f"v_mul_f32 v193, 0x{f2u(-math.log2(math.e)):08x}, v192\nv_exp_f32 v193, v193\nv_add_f32 v193, 1.0, v193\nv_rcp_f32 v193, v193\nv_mul_f32 v192, v192, v193")
                p.e(f"v_accvgpr_write_b32 a{128+n*16+r}, v192")
        for x in C.step(t): p.e(x)
        if t==12: p.e(f"buffer_load_dword v{V_POLL}, v{V_PADDR}, {sr(S_FL)}, s{S_T1} offen sc1")
        if t>=14:
            if nw<46: flat(p,C.loadW(nw)); nw+=1
            if na<46: flat(p,C.loadA(na)); na+=1
        else:
            budget=9
            while budget>0:
                if na<14 and len(C.free)>=9+(8 if t+2<npre else 0):
                    flat(p,C.loadW(nw)+C.loadA(na)); nw+=1; na+=1; budget-=9
                elif na>=14 and len(C.free)>=5+4*LA:
                    flat(p,C.loadW(nw)); nw+=1; budget-=5
                else: break
    stamp(p,8)
    for q in range(4):
        for n in range(5):
            p.e(f"ds_write_b128 v{200 if q<2 else 205}, {r4('a',(q*5+n)*4)} offset:{(q&1)*20480+n*1024}")
    for i in range(10): p.e(f"v_lshlrev_b32 v{100+2*i}, 16, v{212+i}\nv_and_b32 v{101+2*i}, 0xffff0000, v{212+i}")
    for n in range(5):
        for r in range(4): p.e(f"v_accvgpr_read_b32 v{120+n*4+r}, a{128+n*16+r}")
    p.e("s_waitcnt lgkmcnt(0)\ns_barrier")
    for n in range(5):
        for src in range(4): p.e(f"ds_read_b128 {r4('v',(n*4+src)*4)}, v203 offset:{src*5120+n*1024}")
    for n in range(5):
        b=n*16
        for z in (0,2):
            p.e(f"v_pk_add_f32 v[{b+z}:{b+z+1}], v[{b+z}:{b+z+1}], v[{b+4+z}:{b+5+z}]\nv_pk_add_f32 v[{b+8+z}:{b+9+z}], v[{b+8+z}:{b+9+z}], v[{b+12+z}:{b+13+z}]")
            p.e(f"v_pk_add_f32 v[{b+z}:{b+z+1}], v[{b+z}:{b+z+1}], v[{b+8+z}:{b+9+z}]")
            p.e(f"v_pk_fma_f32 v[{100+n*4+z}:{101+n*4+z}], v[{b+z}:{b+z+1}], v[{120+n*4+z}:{121+n*4+z}], v[{100+n*4+z}:{101+n*4+z}]")
            p.e(f"v_cvt_pk_bf16_f32 v{140+n*2+z//2}, v{100+n*4+z}, v{101+n*4+z}")
        p.e(f"buffer_store_dwordx2 v[{140+2*n}:{141+2*n}], v202, {sr(S_OUT)}, 0 offen offset:{8*n}")

def rollup(L, tags_first, label):
    reps=[[i for i in L if i.tag in tg] for tg in tags_first]
    t0=[i.text for i in reps[0]]
    for r in reps[1:]:
        assert [i.text for i in r]==t0, f"loop bodies differ {label}"
    alltags=set(t for tg in tags_first for t in tg)
    first=next(k for k,i in enumerate(L) if i.tag in alltags)
    last=max(k for k,i in enumerate(L) if i.tag in alltags)
    assert all(i.tag in alltags for i in L[first:last+1])
    body=list(reps[0])
    mk=[k for k,i in enumerate(body) if i.kind=='mfma']
    body.insert(mk[-1]+1, I(f"s_cmp_lg_u32 s{S_CNT}, 0"))
    body.insert(mk[-2]+1, I(f"s_sub_u32 s{S_CNT}, s{S_CNT}, 1"))
    assert not any(i.kind=='salu' for i in body[mk[-1]+3:]), [i.text for i in body[mk[-1]:]]
    body.append(I(f"s_cbranch_scc1 {label}"))
    return L[:first]+[I(f"s_mov_b32 s{S_CNT}, {len(reps)}"),I(f".p2align {OPT['align']}"),I(f"{label}:")]+body+L[last+1:]

def k1():
    p=Prog()
    if OPT['stamps']: p.e("s_memrealtime s[90:91]")
    setup(p); stamp(p,0)
    if OPT['stamps']: p.e("v_writelane_b32 v254, s90, 31")
    prologue(p); stamp(p,2); pro_epilogue(p); stamp(p,3); attention_and_c(p); stamp_out(p,10)
    p.e("K1_end:\ns_endpgm")
    rep=[]
    L=finish(p.L, report=rep)
    for r in rep:
        if r[3] and r[3]!='slow': print("; pad in", r, file=sys.stderr)
    L=rollup(L, [[f"per{j+k}" for k in range(4)] for j in range(2,30,4)], "K1_att")
    return L

HDR = open("recurrent_scan__mha_block_cached__glu_gated_reglu__prompt.s.ref").read().split("; Override launch")[0]
KN="recurrent_scan__mha_block_cached__glu_gated_reglu__prompt_kernel"
TINY="""
.globl {n}
.p2align 8
.type {n},@function
{n}:
  s_memrealtime s[8:9]
  s_load_dwordx2 s[4:5], s[0:1], 88
  s_waitcnt lgkmcnt(0)
  s_add_u32 s4, s4, 0x4100000
  s_addc_u32 s5, s5, 0
  s_mov_b32 s6, 64
  s_mov_b32 s7, 0x20000
  s_memrealtime s[10:11]
  s_waitcnt lgkmcnt(0)
  v_mov_b32 v2, s8
  v_mov_b32 v3, s10
  v_mov_b32 v1, {o}
  buffer_store_dwordx2 v[2:3], v1, s[4:7], 0 offen
  s_endpgm
"""
def main():
    if OPT.get('sandwich'):
        s = HDR + "; @launch kernel=pre_kernel grid=(1,1,1) block=(64,1,1) lds=0\n; @launch kernel=main_kernel grid=(256,1,1) block=(256,1,1) lds=163840\n; @launch kernel=post_kernel grid=(1,1,1) block=(64,1,1) lds=0\n"
        s += '.amdgcn_target "amdgcn-amd-amdhsa--gfx950"\n.text\n' + TINY.format(n="pre_kernel",o=0) + TINY.format(n="post_kernel",o=8) + head("main_kernel")+text(k1())
        s += ".p2align 8\n.fill 2048, 4, 0xbf800000\n" + kd("pre_kernel",8,8)+kd("post_kernel",8,8)+kd("main_kernel",512,256)
        return s
    s = HDR
    s += "; @launch grid=(256,1,1) block=(256,1,1) lds=163840\n"
    s += '.amdgcn_target "amdgcn-amd-amdhsa--gfx950"\n.text\n'
    s += head(KN)+text(k1())
    s += ".p2align 8\n.fill 2048, 4, 0xbf800000\n"
    s += kd(KN,512,256)
    return s
if __name__=="__main__":
    for a in sys.argv[2:]:
        k,v=a.split("="); OPT[k]=eval(v)
    open(sys.argv[1],"w").write(main())
```
